```python
import torch

def _softmax(x, axis=-1):
    return torch.softmax(x, dim=axis)

def _gelu(x):
    return torch.nn.functional.gelu(x, approximate='tanh')

def _silu(x):
    return torch.nn.functional.silu(x)

def _sigmoid(x):
    return torch.sigmoid(x)

def _layernorm(x, axis=-1, eps=1e-05):
    m = x.mean(dim=axis, keepdim=True)
    v = x.var(dim=axis, keepdim=True, unbiased=False)
    return (x - m) / torch.sqrt(v + eps)

def _scatter_add(tgt, idx, src, axis=0):
    return tgt.clone().index_add_(axis, idx, src)

def _segment_sum(src, seg, n):
    out = torch.zeros((n,) + src.shape[1:], dtype=src.dtype)
    return out.index_add_(0, seg, src)

def _pad(x, pw):
    flat = tuple((v for pair in reversed(pw) for v in pair))
    return torch.nn.functional.pad(x, flat)
kernel_name = 'adaLN_cond__ssm_conv_s4__mixer_gmlp__prompt'

def setup_inputs():

    _w = lambda a: (lambda t: t.to(torch.bfloat16) if t.is_floating_point() else t)(torch.as_tensor(a))

    def _A_setup():
        B, L, D, N = (1, 2048, 576, 128)
        A_re = -(lambda _x: torch.exp(torch.as_tensor(_x)))((lambda *s: torch.randn(*s, dtype=torch.bfloat16) * 3.2)(D, N))
        A_im = torch.pi * (lambda *s: torch.randn(*s, dtype=torch.bfloat16) * 0.1)(D, N)
        B_re = (lambda *s: torch.randn(*s, dtype=torch.bfloat16) * 0.2)(D, N)
        B_im = (lambda *s: torch.randn(*s, dtype=torch.bfloat16) * 0.2)(D, N)
        C_re = (lambda *s: torch.randn(*s, dtype=torch.bfloat16) * 0.2)(D, N)
        C_im = (lambda *s: torch.randn(*s, dtype=torch.bfloat16) * 0.2)(D, N)
        log_dt = (lambda *s: torch.randn(*s, dtype=torch.bfloat16) * 0.1)(D) * 0.5 - 4.0
        Dskip = (lambda *s: torch.randn(*s, dtype=torch.bfloat16) * 0.2)(D)
        return {'u': _w((lambda *s: torch.randn(*s, dtype=torch.bfloat16) * 0.05)(B, L, D)), 'A_re': _w(A_re), 'A_im': _w(A_im), 'B_re': _w(B_re), 'B_im': _w(B_im), 'C_re': _w(C_re), 'C_im': _w(C_im), 'log_dt': _w(log_dt), 'Dskip': _w(Dskip)}
    _A_in = _A_setup()

    def _B_setup():
        B, S, D, F = (1, 2048, 576, 4608)
        Fh = F // 2
        return {'x': _w((lambda *s: torch.randn(*s, dtype=torch.bfloat16) * 0.05)(B, S, D)), 'w_in': _w((lambda *s: torch.randn(*s, dtype=torch.bfloat16) * 0.2)(D, 2 * Fh)), 'w_sp': _w(0.01 * (lambda *s: torch.randn(*s, dtype=torch.bfloat16) * 0.2)(S, S)), 'b_sp': _w(1.0 + 0.01 * (lambda *s: torch.randn(*s, dtype=torch.bfloat16) * 0.05)(S)), 'w_out': _w((lambda *s: torch.randn(*s, dtype=torch.bfloat16) * 0.05)(Fh, D))}
    _B_in = _B_setup()
    return {'A_u': _A_in['u'], 'A_A_re': _A_in['A_re'], 'A_A_im': _A_in['A_im'], 'A_B_re': _A_in['B_re'], 'A_B_im': _A_in['B_im'], 'A_C_re': _A_in['C_re'], 'A_C_im': _A_in['C_im'], 'A_log_dt': _A_in['log_dt'], 'A_Dskip': _A_in['Dskip'], 'B_x': _B_in['x'], 'B_w_in': _B_in['w_in'], 'B_w_sp': _B_in['w_sp'], 'B_b_sp': _B_in['b_sp'], 'B_w_out': _B_in['w_out'], 'c': _w((lambda *s: torch.randn(*s, dtype=torch.bfloat16) * 0.1)(1, 576) * 8.0), 'w_mod': _w((lambda *s: torch.randn(*s, dtype=torch.bfloat16) * 0.1)(576, 6 * 576) * 576 ** (-0.5) * 8.0)}

def reference(A_u, A_A_re, A_A_im, A_B_re, A_B_im, A_C_re, A_C_im, A_log_dt, A_Dskip, B_x, B_w_in, B_w_sp, B_b_sp, B_w_out, c, w_mod):

    def _A_ref(u, A_re, A_im, B_re, B_im, C_re, C_im, log_dt, Dskip):
        Bsz, L, D = u.shape
        dt = torch.exp(log_dt)[:, None]
        A = A_re + 1j * A_im
        Bc = B_re + 1j * B_im
        Cc = C_re + 1j * C_im
        logdA = dt * A
        dB = dt * Bc
        l = (lambda x, dt: x.to(dt))(torch.arange(L), A_re.dtype)
        P = torch.exp(logdA[:, :, None] * l[None, None, :])
        K = torch.einsum('dn,dnl,dn->dl', Cc, P, dB).real
        L2 = 2 * L
        Kp = _pad(K, ((0, 0), (0, L)))
        up = (lambda x, *d: x.permute(*d))(u, 0, 2, 1)
        up = _pad(up, ((0, 0), (0, 0), (0, L)))
        Kf = (lambda x, axes=(-2, -1): torch.fft.rfft2(x.float(), dim=axes))(Kp[:, None, :], axes=(-2, -1))
        Uf = (lambda x, axes=(-2, -1): torch.fft.rfft2(x.float(), dim=axes))(up[:, :, None, :], axes=(-2, -1))
        Yf = Uf * Kf[None, :, :, :]
        y = (lambda x, s, axes=(-2, -1): torch.fft.irfft2(x, s=s, dim=axes).to(torch.bfloat16))(Yf, (1, L2), axes=(-2, -1))[:, :, 0, :L]
        y = (lambda x, *d: x.permute(*d))(y, 0, 2, 1) + u * Dskip[None, None, :]
        return y

    def _B_ref(x, w_in, w_sp, b_sp, w_out):
        B, S, D = x.shape
        F = w_in.shape[-1]
        Fh = F // 2
        z = _gelu(torch.einsum('bsd,df->bsf', x, w_in))
        z1 = z[..., :Fh].clone()
        z2 = _layernorm(z[..., Fh:], axis=-1)
        g = torch.einsum('ts,bsf->btf', w_sp, z2) + b_sp[None, :, None]
        return torch.einsum('bsf,fd->bsd', z1 * g, w_out)
    x = A_u
    mod = (_silu(c) @ w_mod).reshape(c.shape[0], 6, 1, -1)
    sa, ca, ga, sb, cb, gb = (mod[:, 0].clone(), mod[:, 1].clone(), mod[:, 2].clone(), mod[:, 3].clone(), mod[:, 4].clone(), mod[:, 5].clone())
    h = _layernorm(x, axis=-1) * (1 + ca) + sa
    x = x + ga * _A_ref(h, A_A_re, A_A_im, A_B_re, A_B_im, A_C_re, A_C_im, A_log_dt, A_Dskip)
    h = _layernorm(x, axis=-1) * (1 + cb) + sb
    x = x + gb * _B_ref(h, B_w_in, B_w_sp, B_b_sp, B_w_out)
    return x
```

```python
import re

class Asm:
    def __init__(self):
        self.lines = []
        self.uid = 0
    def __call__(self, s):
        for l in s.split('\n'):
            l = l.split(';')[0].strip() if not l.strip().startswith(';') else ''
            if l:
                self.lines.append(l)
    def c(self, s):
        self.lines.append('; ' + s)
    def raw(self, s):
        self.lines.append(s)
    def label(self, name):
        self.lines.append(name + ':')
    def newlabel(self, base='L'):
        self.uid += 1
        return f'{base}_{self.uid}'
    def text(self, fix=True):
        ls = fix_hazards(self.lines) if fix else self.lines
        out = []
        for l in ls:
            if l.endswith(':') or l.startswith('.') or l.startswith(';'):
                out.append(l)
            else:
                out.append('  ' + l)
        return '\n'.join(out) + '\n'

def vr(b, n=1):
    return f'v{b}' if n == 1 else f'v[{b}:{b+n-1}]'
def ar(b, n=1):
    return f'a{b}' if n == 1 else f'a[{b}:{b+n-1}]'
def sr(b, n=1):
    return f's{b}' if n == 1 else f's[{b}:{b+n-1}]'

_reg_re = re.compile(r'^(-|\|)?(abs\()?([vas])(\d+)\)?\|?$')
_rng_re = re.compile(r'^(-)?([vas])\[(\d+):(\d+)\]$')

def regs_of(tok):
    tok = tok.strip()
    m = _rng_re.match(tok)
    if m:
        return {(m.group(2), i) for i in range(int(m.group(3)), int(m.group(4)) + 1)}
    m = _reg_re.match(tok)
    if m:
        return {(m.group(3), int(m.group(4)))}
    if tok == 'vcc':
        return {('s', 'vcc')}
    if tok in ('vcc_lo', 'vcc_hi'):
        return {('s', 'vcc')}
    if tok == 'exec':
        return {('s', 'exec')}
    if tok == 'm0':
        return {('s', 'm0')}
    return set()

TRANS = ('v_exp_f32', 'v_log_f32', 'v_rcp_f32', 'v_rsq_f32', 'v_sqrt_f32', 'v_sin_f32', 'v_cos_f32', 'v_rcp_iflag_f32',
         'v_exp_f16', 'v_log_f16', 'v_rcp_f16', 'v_rsq_f16', 'v_sqrt_f16', 'v_sin_f16', 'v_cos_f16')

class Ins:
    __slots__ = ('text', 'op', 'ops', 'kind', 'wr', 'rd', 'mods', 'srcC', 'srcAB', 'passes', 'store_data', 'dpp')
    def __init__(self, text):
        self.text = text
        parts = text.split(None, 1)
        self.op = parts[0]
        rest = parts[1] if len(parts) > 1 else ''
        toks = [t.strip() for t in rest.split(',')] if rest else []
        self.mods = ''
        if toks:
            sp = toks[-1].split(None, 1)
            toks[-1] = sp[0]
            if len(sp) > 1: self.mods = sp[1]
        self.ops = toks
        op = self.op
        for suf in ('_e32', '_e64', '_dpp', '_sdwa'):
            if op.endswith(suf): op = op[:-len(suf)]
        self.op = op
        self.wr = set(); self.rd = set(); self.srcC = set(); self.srcAB = set(); self.passes = 0
        self.store_data = set(); self.dpp = False
        R = [regs_of(t) for t in toks]
        if op.startswith('v_mfma'):
            self.kind = 'mfma'
            self.wr = R[0]; self.srcAB = R[1] | R[2]; self.srcC = R[3]; self.rd = self.srcAB | self.srcC
            if '16x16x32' in op or '16x16x16' in op: self.passes = 4
            elif '32x32x16' in op or '32x32x8' in op: self.passes = 8
            elif '16x16x4_f32' in op or '16x16x4f32' in op: self.passes = 8
            elif '32x32x2' in op: self.passes = 16
            else: self.passes = 16
        elif op.startswith('v_'):
            self.kind = 'valu'
            self.dpp = ('quad_perm' in self.mods or 'row_' in self.mods or 'wave_' in self.mods or 'quad_perm' in text)
            if op.startswith('v_cmpx'):
                self.wr = R[0] | {('s', 'exec')}; self.rd = set().union(*R[1:]) if len(R) > 1 else set()
            elif op.startswith('v_cmp'):
                self.wr = R[0]; self.rd = set().union(*R[1:])
            elif op in ('v_readfirstlane_b32', 'v_readlane_b32'):
                self.wr = R[0]; self.rd = set().union(*R[1:])
            elif op.startswith('v_permlane16_swap') or op.startswith('v_permlane32_swap'):
                self.wr = R[0] | R[1]; self.rd = R[0] | R[1]
            elif op in ('v_add_co_u32', 'v_sub_co_u32', 'v_subrev_co_u32', 'v_addc_co_u32', 'v_subb_co_u32', 'v_div_scale_f32', 'v_mad_u64_u32'):
                self.wr = R[0] | R[1]; self.rd = set().union(*R[2:])
            else:
                self.wr = R[0]; self.rd = set().union(*R[1:]) if len(R) > 1 else set()
                if op in ('v_fmac_f32', 'v_dot2c_f32_bf16', 'v_pk_fmac_f16', 'v_writelane_b32', 'v_fmac_f16', 'v_dot2c_f32_f16') or self.dpp or op.startswith('v_mov_b32') and 'sdwa' in text:
                    self.rd = self.rd | R[0]
                if op == 'v_cndmask_b32' and len(R) == 3:
                    self.rd = self.rd | {('s', 'vcc')}
        elif op.startswith('ds_'):
            self.kind = 'ds'
            if op.startswith('ds_read') or op.startswith('ds_bpermute') or op.startswith('ds_permute') or op.startswith('ds_swizzle'):
                self.wr = R[0]; self.rd = set().union(*R[1:])
            else:
                self.rd = set().union(*R) if R else set()
        elif op.startswith('buffer_') or op.startswith('global_'):
            self.kind = 'vmem'
            lds = ' lds' in (' ' + self.mods) or '_lds_' in op
            if op in ('buffer_wbl2', 'buffer_inv'):
                pass
            elif op.startswith('buffer_load') and not lds:
                self.wr = R[0]; self.rd = set().union(*R[1:])
            elif op.startswith('global_load') and not lds:
                self.wr = R[0]; self.rd = set().union(*R[1:])
            elif lds:
                self.rd = set().union(*R) | {('s', 'm0')}
            else:
                self.rd = set().union(*R)
                if op.startswith('buffer_store'):
                    if 'x3' in op or 'x4' in op: self.store_data = R[0]
                elif op.startswith('global_store'):
                    if 'x3' in op or 'x4' in op: self.store_data = R[1]
                if 'atomic' in op and 'sc0' in self.mods:
                    self.wr = R[0]
        elif op.startswith('s_'):
            self.kind = 'salu'
            if op.startswith('s_cmp') or op.startswith('s_cbranch') or op in ('s_branch', 's_waitcnt', 's_nop', 's_barrier', 's_endpgm', 's_sleep', 's_setprio', 's_bitcmp0_b32', 's_bitcmp1_b32', 's_setreg_b32'):
                self.rd = set().union(*R) if R else set()
            else:
                self.wr = R[0] if R else set(); self.rd = set().union(*R[1:]) if len(R) > 1 else set()
                if 'saveexec' in op: self.wr = self.wr | {('s', 'exec')}
        else:
            raise ValueError('unknown instruction: ' + text)

def states_of(ins):
    if ins.op == 's_nop':
        return int(ins.ops[0], 0) + 1
    return 1

def vg(regs):
    return {r for r in regs if r[0] in 'va'}
def sg(regs):
    return {r for r in regs if r[0] == 's'}

def required(prod, cons):
    need = 0
    pk, ck = prod.kind, cons.kind
    pw = prod.wr
    if pk == 'valu':
        pv = vg(pw); ps = sg(pw)
        if ck == 'mfma' and pv & cons.rd: need = max(need, 2)
        if prod.op.startswith('v_dot'):
            if cons.op == prod.op:
                ab = set().union(*[regs_of(t) for t in (cons.ops[1:3])])
                if pv & ab: need = max(need, 3)
            elif pv & (cons.rd | cons.wr): need = max(need, 3)
        if ck == 'valu':
            if prod.op in TRANS and cons.op not in TRANS and pv & cons.rd: need = max(need, 1)
            if prod.op in TRANS and cons.op in TRANS and pv & cons.rd: need = max(need, 1)
            if cons.dpp and pv & cons.rd: need = max(need, 2)
            if cons.op.startswith('v_permlane') and pv & cons.rd: need = max(need, 2)
            if cons.op in ('v_readlane_b32', 'v_readfirstlane_b32') and pv & cons.rd: need = max(need, 1)
            if ps & cons.rd:
                need = max(need, 4 if cons.op in ('v_readlane_b32', 'v_writelane_b32') else 2)
            if ('s', 'exec') in ps:
                need = max(need, 5 if cons.dpp else 4 if cons.op.startswith('v_permlane') or 'lane' in cons.op else 2)
            if ('op_sel' in prod.mods or 'sdwa' in prod.text) and not prod.op.startswith('v_pk_') and pv & (cons.rd | cons.wr): need = max(need, 1)
        if ck == 'mfma' and ('s', 'exec') in ps: need = max(need, 4)
        if ck == 'vmem' and ps & cons.rd: need = max(need, 5)
        if ck == 'salu' and ps & cons.rd: need = max(need, 1)
        if ck == 'ds' and ps & cons.rd: need = max(need, 5)
    if pk == 'mfma':
        P = prod.passes
        tab_rw = {2: 5, 4: 8, 8: 12, 16: 20}[P]
        tab_ovl = {2: 4, 4: 6, 8: 10, 16: 18}[P]
        tab_war = {2: 1, 4: 3, 8: 7, 16: 15}[P]
        if ck == 'mfma':
            if pw & cons.srcAB: need = max(need, tab_rw)
            if pw & cons.srcC:
                if pw == cons.srcC and cons.passes == P: need = max(need, 2 if P == 2 else 0)
                else: need = max(need, tab_ovl)
            elif pw & cons.wr: need = max(need, tab_ovl)
        elif ck in ('valu', 'ds', 'vmem'):
            if pw & (cons.rd | cons.wr): need = max(need, tab_rw)
            if ck == 'valu' and prod.srcC & cons.wr: need = max(need, tab_war)
    if pk == 'vmem' and prod.store_data:
        if ck == 'valu' and prod.store_data & cons.wr: need = max(need, 2)
        elif prod.store_data & cons.wr: need = max(need, 1)
    if pk == 'salu' and ('s', 'm0') in pw:
        if ck == 'vmem' and ('s', 'm0') in cons.rd: need = max(need, 1)
    return need

NOPS_INSERTED = [0]
def fix_hazards(lines):
    out = []
    hist = []
    WINDOW = 24
    for l in lines:
        if l.startswith(';') or l.startswith('.') :
            out.append(l); continue
        if l.endswith(':'):
            out.append(l); continue
        ins = Ins(l)
        need = 0
        dist = 0
        for p in reversed(hist):
            r = required(p, ins)
            if r > dist: need = max(need, r - dist)
            dist += states_of(p)
            if dist >= WINDOW: break
        while need > 0:
            n = min(need, 16)
            nop = Ins(f's_nop {n-1}')
            out.append(nop.text); hist.append(nop); NOPS_INSERTED[0] += 1
            need -= n
        out.append(l); hist.append(ins)
        if len(hist) > 64: hist = hist[-40:]
        if ins.op in ('s_branch', 's_endpgm'):
            hist = []
    return out

def kernel_begin(a, name):
    a.raw(f'.globl {name}')
    a.raw('.p2align 8')
    a.raw(f'.type {name},@function')
    a.raw(f'{name}:')

def kernel_desc(name, vgpr, sgpr, accum, kernarg=152, wg_y=False):
    s = f'''.amdhsa_kernel {name}
  .amdhsa_next_free_vgpr {vgpr}
  .amdhsa_next_free_sgpr {sgpr}
  .amdhsa_accum_offset {accum}
  .amdhsa_group_segment_fixed_size 0
  .amdhsa_kernarg_size {kernarg}
  .amdhsa_user_sgpr_count 2
  .amdhsa_user_sgpr_kernarg_segment_ptr 1
  .amdhsa_system_sgpr_workgroup_id_x 1
'''
    if wg_y:
        s += '  .amdhsa_system_sgpr_workgroup_id_y 1\n'
    s += '.end_amdhsa_kernel\n'
    return s
```

```python
from asmgen import *
from layout import *
import struct
def f32bits(x):
    return struct.unpack('<I', struct.pack('<f', x))[0]
def H(x): return hex(f32bits(x))
LOG2E = 1.4426950408889634
PROF = [False]

def srd(a, d, p, nbytes):
    if d != p: a(f's_mov_b32 s{d}, s{p}')
    a(f's_and_b32 s{d+1}, s{p+1}, 0xffff')
    a(f's_mov_b32 s{d+2}, {nbytes}')
    a(f's_mov_b32 s{d+3}, 0x20000')

def kstart(a, name):
    kernel_begin(a, name)
    if PROF[0]:
        a('s_memrealtime s[96:97]')
        for i in range(4): a(f's_mov_b32 s{82+2*i}, 0')

def stamp(a, i):
    if PROF[0]:
        a(f's_memrealtime s[{82+2*i}:{83+2*i}]')

def kexit(a, name, kidx):
    a.label(f'{name}_exit')
    if PROF[0]:
        a('s_memrealtime s[98:99]')
        a(f's_load_dwordx2 s[92:93], s[0:1], {KA["ws"]}')
        a('s_getreg_b32 s100, hwreg(HW_REG_XCC_ID)')
        a('s_waitcnt lgkmcnt(0)')
        a('s_and_b32 s93, s93, 0xffff'); a(f's_mov_b32 s94, {WS_SIZE}'); a('s_mov_b32 s95, 0x20000')
        a('s_mov_b64 exec, -1')
        a('v_mov_b32 v4, s96'); a('v_mov_b32 v5, s98'); a('v_mov_b32 v6, s100'); a('v_mov_b32 v7, 0')
        a('v_mov_b32 v8, s82'); a('v_mov_b32 v9, s84'); a('v_mov_b32 v10, s86'); a('v_mov_b32 v11, s88')
        a('s_lshl_b32 s101, s2, 5'); a(f's_add_u32 s101, s101, {WS_PROF + kidx*0x10000}')
        a('v_mov_b32 v1, 0')
        a('v_cmp_eq_u32 vcc, 0, v0')
        a('s_and_saveexec_b64 s[96:97], vcc')
        a(f's_cbranch_execz {name}_end')
        a('buffer_store_dwordx4 v[4:7], v1, s[92:95], s101 offen')
        a('buffer_store_dwordx4 v[8:11], v1, s[92:95], s101 offen offset:16')
        a.label(f'{name}_end')
    a('s_endpgm')

def dispatch(a, name, jobs):
    base = 0
    for lab, cnt in jobs:
        a(f's_sub_u32 s3, s2, {base}')
        a(f's_cmp_lt_u32 s2, {base+cnt}')
        a(f's_cbranch_scc1 {lab}')
        base += cnt
    a(f's_branch {name}_exit')
    return base

class Stream:
    def __init__(self, a):
        self.a = a; self.lg = []; self.vm = []
    def ds(self, text, tag=None):
        self.a(text); self.lg.append(tag)
    def vmem(self, text, tag=None):
        self.a(text); self.vm.append(tag)
    def _wait(self, lst, tags, cap, name):
        idx = -1
        for i, t in enumerate(lst):
            if t in tags: idx = i
        if idx < 0: return lst
        n = len(lst) - 1 - idx
        n = min(n, cap)
        self.a(f's_waitcnt {name}({n})')
        return lst[len(lst)-n:] if n else []
    def wait_lg(self, *tags): self.lg = self._wait(self.lg, set(tags), 15, 'lgkmcnt')
    def wait_vm(self, *tags): self.vm = self._wait(self.vm, set(tags), 63, 'vmcnt')
    def wait_lg_all(self):
        if self.lg: self.a('s_waitcnt lgkmcnt(0)'); self.lg = []
    def wait_vm_all(self):
        if self.vm: self.a('s_waitcnt vmcnt(0)'); self.vm = []

def xcd_tile(a, si, sj, t1, t2):
    a(f's_and_b32 s{t1}, s2, 7'); a(f's_lshr_b32 s{t2}, s2, 3')
    a(f's_and_b32 s{si}, s{t1}, 3'); a(f's_lshl_b32 s{si}, s{si}, 2'); a(f's_and_b32 s{sj}, s{t2}, 3'); a(f's_add_u32 s{si}, s{si}, s{sj}')
    a(f's_lshr_b32 s{sj}, s{t1}, 2'); a(f's_lshl_b32 s{sj}, s{sj}, 3'); a(f's_lshr_b32 s{t2}, s{t2}, 2'); a(f's_add_u32 s{sj}, s{sj}, s{t2}')
```

```python
from common import *

RSL = 1168

def tile_load(a, srd_s, soff, rowstride, V=8):
    a('v_lshrrev_b32 v1, 3, v0')
    a('v_and_b32 v2, 7, v0')
    a(f'v_mul_u32_u24 v3, {rowstride}, v1')
    a('v_lshl_add_u32 v3, v2, 4, v3')
    for i in range(9):
        o = f' offset:{i*128}' if i else ''
        a(f'buffer_load_dwordx4 v[{V+4*i}:{V+4*i+3}], v3, s[{srd_s}:{srd_s+3}], {soff} offen{o}')

def tile_to_lds(a, V=8):
    a(f'v_mul_u32_u24 v3, {RSL}, v1')
    a('v_lshl_add_u32 v3, v2, 4, v3')
    for i in range(9):
        a(f'ds_write_b128 v3, v[{V+4*i}:{V+4*i+3}] offset:{i*128}')

def tr_addr(a, rowmul, second, dst=8):
    a('v_and_b32 v4, 63, v0')
    a('v_lshrrev_b32 v5, 6, v0')
    a('v_lshrrev_b32 v6, 4, v4')
    a('v_bfe_u32 v7, v4, 2, 2')
    a(f'v_lshl_add_u32 v7, v6, {rowmul}, v7')
    a(f'v_mul_u32_u24 v7, {RSL}, v7')
    a('v_and_b32 v50, 3, v4')
    a('v_lshl_add_u32 v7, v50, 3, v7')
    a('v_lshl_add_u32 v7, v5, 5, v7')
    for m in range(9):
        a(f'ds_read_b64_tr_b16 v[{dst+4*m}:{dst+1+4*m}], v7 offset:{m*128}')
        a(f'ds_read_b64_tr_b16 v[{dst+2+4*m}:{dst+3+4*m}], v7 offset:{m*128+second*RSL}')

def job_T(a, ex):
    a.c('---- job T: transpose x + LN1 stats')
    a(f's_load_dwordx2 s[4:5], s[0:1], {KA["x"]}')
    a(f's_load_dwordx2 s[8:9], s[0:1], {KA["ws"]}')
    a('s_waitcnt lgkmcnt(0)')
    srd(a, 4, 4, 2048*1152)
    srd(a, 8, 8, WS_SIZE)
    a(f's_mul_i32 s12, s3, {32*1152}')
    tile_load(a, 4, 's12', 1152)
    a('s_and_b32 s13, s3, 15'); a('s_lshl_b32 s13, s13, 8'); a(f's_add_u32 s13, s13, {WS_CNT}')
    a('v_mov_b32 v45, 0')
    a('buffer_store_dword v45, v45, s[8:11], s13 offen sc1')
    a('v_mov_b32 v44, 0x3f803f80')
    a('v_mov_b32 v45, 0'); a('v_mov_b32 v46, 0')
    stamp(a, 0)
    a('s_waitcnt vmcnt(0)')
    stamp(a, 1)
    tile_to_lds(a)
    a('s_waitcnt lgkmcnt(0)')
    a('s_barrier')
    tr_addr(a, 3, 4, dst=52)
    for i in range(36):
        a(f'v_dot2c_f32_bf16 v45, v{8+i}, v44')
        a(f'v_dot2c_f32_bf16 v46, v{8+i}, v{8+i}')
    stamp(a, 2)
    a('v_and_b32 v50, 15, v4')
    a('v_lshl_add_u32 v50, v5, 4, v50')
    a('v_lshlrev_b32 v50, 6, v50')
    a('v_lshl_add_u32 v50, v6, 4, v50')
    a(f's_mul_i32 s13, s3, {576*64}')
    a(f's_add_u32 s13, s13, {WS_XT}')
    for m in range(9):
        a(f's_waitcnt lgkmcnt({min(15, 2*(8-m))})')
        a(f'buffer_store_dwordx4 v[{52+4*m}:{55+4*m}], v50, s[8:11], s13 offen sc1')
        if m < 8: a(f's_add_u32 s13, s13, {64*64}')
    for m in ('quad_perm:[1,0,3,2]', 'quad_perm:[2,3,0,1]', 'row_half_mirror'):
        a(f'v_add_f32_dpp v45, v45, v45 {m} row_mask:0xf bank_mask:0xf')
        a(f'v_add_f32_dpp v46, v46, v46 {m} row_mask:0xf bank_mask:0xf')
    a(f'v_mul_f32 v45, {H(1.0/576)}, v45')
    a(f'v_mul_f32 v46, {H(1.0/576)}, v46')
    a('v_fma_f32 v46, -v45, v45, v46')
    a('v_max_f32 v46, 0, v46')
    a(f'v_add_f32 v46, {H(1e-5)}, v46')
    a('v_rsq_f32 v48, v46')
    a('v_mul_f32 v49, v45, v48')
    a('s_lshl_b32 s13, s3, 7')
    a(f's_add_u32 s14, s13, {WS_MU}')
    a(f's_add_u32 s13, s13, {WS_RHO}')
    a('v_lshlrev_b32 v3, 2, v1')
    a('v_cmp_eq_u32 vcc, 0, v2')
    a('s_and_saveexec_b64 s[16:17], vcc')
    a('buffer_store_dword v48, v3, s[8:11], s13 offen sc1')
    a('buffer_store_dword v49, v3, s[8:11], s14 offen sc1')
    a(f's_branch {ex}')

def job_P2(a, ex):
    a.c('---- job P2: w_out re-layout')
    a(f's_load_dwordx2 s[4:5], s[0:1], {KA["w_out"]}')
    a(f's_load_dwordx2 s[8:9], s[0:1], {KA["ws"]}')
    a('s_waitcnt lgkmcnt(0)')
    srd(a, 4, 4, 2304*1152)
    srd(a, 8, 8, WS_SIZE)
    a(f's_mul_i32 s12, s3, {32*1152}')
    tile_load(a, 4, 's12', 1152)
    a('s_waitcnt vmcnt(0)')
    tile_to_lds(a)
    a('s_waitcnt lgkmcnt(0)')
    a('s_barrier')
    tr_addr(a, 2, 16)
    a('v_lshlrev_b32 v50, 4, v4')
    a('v_readfirstlane_b32 s14, v5')
    for m in range(9):
        a(f's_add_u32 s15, s14, {4*m}')
        a('s_mul_i32 s16, s15, 205'); a('s_lshr_b32 s16, s16, 10')
        a('s_mul_i32 s17, s16, 5'); a('s_sub_u32 s17, s15, s17')
        a('s_mul_i32 s16, s16, 72'); a('s_add_u32 s16, s16, s3'); a('s_mul_i32 s16, s16, 5120')
        a('s_lshl_b32 s17, s17, 10'); a('s_add_u32 s16, s16, s17')
        a('s_sub_u32 s18, s15, 20')
        a('s_lshr_b32 s19, s18, 2'); a('s_mul_i32 s19, s19, 72'); a('s_add_u32 s19, s19, s3'); a('s_lshl_b32 s19, s19, 12')
        a('s_and_b32 s18, s18, 3'); a('s_lshl_b32 s18, s18, 10'); a('s_add_u32 s19, s19, s18'); a(f's_add_u32 s19, s19, {4*72*5120}')
        a('s_cmp_lt_u32 s15, 20'); a('s_cselect_b32 s16, s16, s19')
        a(f's_add_u32 s16, s16, {WS_WOT}')
        a(f's_waitcnt lgkmcnt({min(15, 2*(8-m))})')
        a(f'buffer_store_dwordx4 v[{8+4*m}:{11+4*m}], v50, s[8:11], s16 offen sc1')
    a(f's_branch {ex}')

def job_P3(a, ex):
    a.c('---- job P3: w_sp re-layout')
    a(f's_load_dwordx2 s[4:5], s[0:1], {KA["w_sp"]}')
    a(f's_load_dwordx2 s[8:9], s[0:1], {KA["ws"]}')
    a('v_and_b32 v4, 63, v0'); a('v_lshrrev_b32 v5, 6, v0')
    a('v_readfirstlane_b32 s14, v5')
    a('s_waitcnt lgkmcnt(0)')
    srd(a, 4, 4, 2048*4096)
    srd(a, 8, 8, WS_SIZE)
    a('s_lshl_b32 s15, s3, 2'); a('s_add_u32 s15, s15, s14')
    a('s_lshr_b32 s16, s15, 3')
    a('s_and_b32 s17, s15, 7')
    a('v_and_b32 v6, 15, v4'); a('v_lshlrev_b32 v6, 12, v6'); a('v_lshrrev_b32 v7, 4, v4'); a('v_lshl_add_u32 v6, v7, 4, v6')
    a('s_lshl_b32 s18, s16, 16'); a('s_lshl_b32 s19, s17, 9'); a('s_add_u32 s18, s18, s19')
    for i in range(8):
        o = f' offset:{i*64}' if i else ''
        a(f'buffer_load_dwordx4 v[{8+4*i}:{11+4*i}], v6, s[4:7], s18 offen{o}')
    a('s_lshr_b32 s19, s16, 1'); a('s_lshl_b32 s19, s19, 17')
    a('s_and_b32 s20, s16, 1'); a('s_lshl_b32 s20, s20, 10'); a('s_add_u32 s19, s19, s20')
    a('s_lshl_b32 s20, s17, 14'); a('s_add_u32 s19, s19, s20'); a(f's_add_u32 s19, s19, {WS_WSP}')
    a('v_lshlrev_b32 v6, 4, v4')
    for i in range(8):
        r = 8+4*i
        a('s_waitcnt vmcnt(7)')
        a(f'v_permlane16_swap_b32 v{r}, v{r+2}'); a(f'v_permlane16_swap_b32 v{r+1}, v{r+3}')
        a(f'v_permlane32_swap_b32 v{r}, v{r+2}'); a(f'v_permlane32_swap_b32 v{r+1}, v{r+3}')
        a(f'buffer_store_dwordx4 v[{r}:{r+3}], v6, s[8:11], s19 offen sc1')
        if i < 7: a('s_add_u32 s19, s19, 2048')
    a(f's_branch {ex}')

def job_mod(a, ex):
    a.c('---- job mod')
    a(f's_load_dwordx4 s[4:7], s[0:1], {KA["c"]}')
    a(f's_load_dwordx2 s[16:17], s[0:1], {KA["ws"]}')
    a('v_and_b32 v1, 3, v0')
    a('v_lshrrev_b32 v2, 2, v0')
    a('v_mul_u32_u24 v3, 6912, v2')
    a('v_lshl_add_u32 v3, v1, 4, v3')
    a('s_lshl_b32 s13, s3, 6')
    a('v_lshlrev_b32 v4, 1, v2')
    a('s_waitcnt lgkmcnt(0)')
    srd(a, 8, 6, 576*3456*2)
    srd(a, 4, 4, 576*2)
    srd(a, 16, 16, WS_SIZE)
    for i in range(9):
        a(f'buffer_load_ushort v{48+i}, v4, s[4:7], 0 offen offset:{i*128}')
    for i in range(9):
        a(f'buffer_load_dwordx4 v[{8+4*i}:{11+4*i}], v3, s[8:11], s13 offen')
        if i < 8: a(f's_add_u32 s13, s13, {64*6912}')
    for i in range(8): a(f'v_mov_b32 v{70+i}, 0')
    stamp(a, 0)
    a('s_waitcnt vmcnt(9)')
    stamp(a, 1)
    for i in range(9):
        r = 48+i
        a(f'v_lshlrev_b32 v{r}, 16, v{r}')
        a(f'v_mul_f32 v68, {H(-LOG2E)}, v{r}')
        a('v_exp_f32 v68, v68')
        a('v_add_f32 v68, 1.0, v68')
        a('v_rcp_f32 v68, v68')
        a(f'v_mul_f32 v{r}, v{r}, v68')
        a(f'v_cvt_pk_bf16_f32 v{58+i}, 0, v{r}')
        a(f'v_lshrrev_b32 v{r}, 16, v{58+i}')
    for i in range(9):
        a(f's_waitcnt vmcnt({8-i})')
        for k in range(4):
            a(f'v_dot2c_f32_bf16 v{70+2*k}, v{8+4*i+k}, v{48+i}')
            a(f'v_dot2c_f32_bf16 v{71+2*k}, v{8+4*i+k}, v{58+i}')
    stamp(a, 2)
    for k in range(8):
        a(f'v_add_f32_dpp v{70+k}, v{70+k}, v{70+k} row_ror:4 row_mask:0xf bank_mask:0xf')
    for k in range(8):
        a(f'v_add_f32_dpp v{70+k}, v{70+k}, v{70+k} row_ror:8 row_mask:0xf bank_mask:0xf')
    a('v_lshrrev_b32 v5, 4, v0'); a('v_lshlrev_b32 v5, 7, v5'); a('v_lshl_add_u32 v5, v1, 5, v5')
    a('v_bfe_u32 v6, v0, 2, 2')
    a('v_cmp_eq_u32 vcc, 0, v6')
    a('s_and_saveexec_b64 s[14:15], vcc')
    a('ds_write_b128 v5, v[70:73]')
    a('ds_write_b128 v5, v[74:77] offset:16')
    a('s_mov_b64 exec, s[14:15]')
    a('s_waitcnt lgkmcnt(0)')
    a('s_barrier')
    a('v_cmp_gt_u32 vcc, 32, v0')
    a('s_and_saveexec_b64 s[14:15], vcc')
    a(f's_cbranch_execz {ex}')
    a('v_lshlrev_b32 v5, 2, v0')
    for i in range(16):
        a(f'ds_read_b32 v{8+i}, v5 offset:{i*128}')
    a('s_waitcnt lgkmcnt(0)')
    for st in (8, 4, 2, 1):
        for i in range(st):
            a(f'v_add_f32 v{8+i}, v{8+i}, v{8+i+st}')
    a('v_cvt_pk_bf16_f32 v6, v8, v8')
    a('v_and_b32 v6, 0xffff0000, v6')
    a('s_lshl_b32 s13, s3, 7')
    a(f's_add_u32 s13, s13, {WS_MOD}')
    a('buffer_store_dword v6, v5, s[16:19], s13 offen sc1')
    a(f's_branch {ex}')

KG_RS = 528
KG_CH = 57*KG_RS
KG_TAB = 3072*4
def cmul(a, d, x, y):
    a(f'v_pk_mul_f32 v[{d}:{d+1}], v[{x}:{x+1}], v[{y}:{y+1}] op_sel:[0,0] op_sel_hi:[0,1]')
    a(f'v_pk_fma_f32 v[{d}:{d+1}], v[{x}:{x+1}], v[{y}:{y+1}], v[{d}:{d+1}] op_sel:[1,1,0] op_sel_hi:[1,0,1] neg_lo:[0,1,0]')

def job_kgen(a, ex):
    a.c('---- job kgen')
    a(f's_load_dwordx8 s[4:11], s[0:1], {KA["A_re"]}')
    a(f's_load_dwordx4 s[12:15], s[0:1], {KA["C_re"]}')
    a(f's_load_dwordx2 s[16:17], s[0:1], {KA["log_dt"]}')
    a(f's_load_dwordx2 s[24:25], s[0:1], {KA["ws"]}')
    a('s_lshl_b32 s22, s3, 8')
    a('v_add_u32 v4, s22, v0'); a('v_lshlrev_b32 v4, 1, v4')
    a('v_lshrrev_b32 v2, 7, v0')
    a('s_lshl_b32 s23, s3, 1'); a('v_add_u32 v3, s23, v2'); a('v_lshlrev_b32 v3, 1, v3')
    a('s_waitcnt lgkmcnt(0)')
    a('global_load_ushort v14, v3, s[16:17]')
    for i, p in enumerate([4, 6, 8, 10, 12, 14]):
        a(f'global_load_ushort v{8+i}, v4, s[{p}:{p+1}]')
    srd(a, 24, 24, WS_SIZE)
    a('v_and_b32 v1, 127, v0'); a('v_lshlrev_b32 v5, 2, v1')
    a(f'v_mul_u32_u24 v6, {KG_CH}, v2'); a('v_add_u32 v5, v5, v6')
    stamp(a, 0)
    a('s_waitcnt vmcnt(0)')
    stamp(a, 1)
    L_HI = struct.unpack('<f', struct.pack('<f', LOG2E))[0]
    L_LO = LOG2E - L_HI
    a('v_lshlrev_b32 v14, 16, v14')
    a(f'v_mul_f32 v15, {H(L_HI)}, v14')
    a(f's_mov_b32 s22, {H(L_HI)}')
    a('v_fma_f32 v16, v14, s22, -v15')
    a(f'v_fmac_f32 v16, {H(L_LO)}, v14')
    a('v_exp_f32 v15, v15')
    a(f'v_mul_f32 v16, {H(0.6931471805599453)}, v16')
    for i in range(6): a(f'v_lshlrev_b32 v{8+i}, 16, v{8+i}')
    a('v_fma_f32 v15, v15, v16, v15')
    a('v_cvt_pk_bf16_f32 v15, v15, v15')
    a('v_and_b32 v15, 0xffff0000, v15')
    a('v_mul_f32 v8, v15, v8'); a('v_mul_f32 v9, v15, v9')
    a(f'v_mul_f32 v8, {H(LOG2E)}, v8')
    a(f'v_mul_f32 v9, {H(1/(2*3.141592653589793))}, v9')
    a('v_mul_f32 v10, v15, v10'); a('v_mul_f32 v11, v15, v11')
    a('v_mul_f32 v18, v12, v10'); a('v_fma_f32 v18, -v13, v11, v18')
    a('v_mul_f32 v19, v12, v11'); a('v_fma_f32 v19, v13, v10, v19')
    def cexp(d, mulc):
        if mulc != 1:
            a(f'v_mul_f32 v16, {H(float(mulc))}, v8'); a(f'v_mul_f32 v17, {H(float(mulc))}, v9')
            x, y = 16, 17
        else:
            x, y = 8, 9
        a(f'v_exp_f32 v26, v{x}'); a(f'v_fract_f32 v27, v{y}')
        a(f'v_cos_f32 v{d}, v27'); a(f'v_sin_f32 v{d+1}, v27')
        a(f'v_mul_f32 v{d}, v26, v{d}'); a(f'v_mul_f32 v{d+1}, v26, v{d+1}')
    cexp(20, 1); cexp(22, 8); cexp(24, 128)
    tmp = [60]
    def put(row, src, neg=False):
        t = tmp[0]; tmp[0] = 60 + (tmp[0]-60+1) % 8
        a(f'v_cvt_pk_bf16_f32 v{t}, v{src}, {"-" if neg else ""}v{src+1}')
        a(f'ds_write_b32 v5, v{t} offset:{row*KG_RS}')
    Q = {1: 20}
    for r in range(2, 8): Q[r] = 30 + 2*(r-2)
    G = [18, 28]
    put(41, G[0], neg=True)
    a('v_mov_b32 v68, 0x00003f80')
    a(f'ds_write_b32 v5, v68 offset:0')
    put(1, 20)
    P = {1: 24}
    Pregs = [42, 44]
    put(8, 24)
    for r in range(2, 8):
        cmul(a, Q[r], Q[r-1], 20)
        cmul(a, G[(r-1) % 2], G[r % 2], 22)
        put(r, Q[r]); put(41 + r-1, G[(r-1) % 2], neg=True)
    gcur = 0
    for r in range(1, 8):
        cmul(a, 46, 24, Q[r]); put(8 + r, 46)
        j = 6 + r
        cmul(a, G[1-gcur], G[gcur], 22); gcur = 1-gcur; put(41 + j, G[gcur], neg=True)
    pc = 24
    for i in range(2, 17):
        pn = Pregs[i % 2]
        cmul(a, pn, pc, 24); pc = pn
        if i in (2, 3):
            base = 16 + (i-2)*4
            put(base, pc)
            for x, r in enumerate((2, 4, 6)):
                cmul(a, 46 + 2*(x % 2), pc, Q[r]); put(base + 1 + x, 46 + 2*(x % 2))
        elif i in (4, 5, 6, 7):
            base = 24 + (i-4)*2
            put(base, pc)
            cmul(a, 46, pc, Q[4]); put(base + 1, 46)
        else:
            put(32 + (i-8), pc)
        if i in (2, 3):
            cmul(a, G[1-gcur], G[gcur], 22); gcur = 1-gcur; put(41 + 12 + i, G[gcur], neg=True)
    a('s_waitcnt lgkmcnt(0)')
    a('s_barrier')
    stamp(a, 2)
    a('v_and_b32 v1, 63, v0'); a('v_and_b32 v7, 15, v1'); a('v_lshrrev_b32 v3, 4, v1')
    a(f'v_mul_u32_u24 v4, {KG_RS}, v7'); a('v_lshl_add_u32 v4, v3, 4, v4'); a('v_add_u32 v4, v4, v6')
    a('v_lshrrev_b32 v5, 6, v0'); a('v_readfirstlane_b32 s22, v5'); a('s_and_b32 s23, s22, 1')
    for s in range(8):
        a(f'ds_read_b128 v[{8+4*s}:{11+4*s}], v4 offset:{41*KG_RS + s*64}')
    lab1 = a.newlabel('kg_t2'); lab2 = a.newlabel('kg_join')
    a('s_cmp_eq_u32 s23, 1'); a(f's_cbranch_scc1 {lab1}')
    for T in range(2):
        for s in range(8):
            a(f'ds_read_b128 v[{40+4*s+32*T}:{43+4*s+32*T}], v4 offset:{T*16*KG_RS + s*64}')
    for T in range(2):
        for i in range(4): a(f'v_mov_b32 v{104+4*T+i}, 0')
    for T in range(2):
        for s in range(8):
            a(f's_waitcnt lgkmcnt({min(15, 15 - s - 8*T)})')
            a(f'v_mfma_f32_16x16x32_bf16 v[{104+4*T}:{107+4*T}], v[{40+4*s+32*T}:{43+4*s+32*T}], v[{8+4*s}:{11+4*s}], v[{104+4*T}:{107+4*T}]')
    a('s_barrier')
    a('v_lshrrev_b32 v8, 1, v3'); a('v_lshlrev_b32 v8, 7, v8'); a('v_and_b32 v9, 1, v3'); a('v_lshl_add_u32 v8, v9, 2, v8')
    a('v_lshl_add_u32 v8, v7, 3, v8'); a('v_lshl_add_u32 v8, v8, 2, v6')
    a('ds_write_b128 v8, v[104:107]')
    a('v_lshlrev_b32 v9, 7, v3'); a('v_add_u32 v9, 256, v9')
    a('v_lshlrev_b32 v10, 8, v3')
    a('v_cmp_gt_u32 vcc, 2, v3')
    a('v_cndmask_b32 v9, v10, v9, vcc')
    a('v_lshl_add_u32 v9, v7, 3, v9'); a('v_lshl_add_u32 v9, v9, 2, v6')
    for i in range(4):
        oa = 2*i*4; ob = (128*(i >> 1) + 4*(i & 1))*4
        a(f'v_mov_b32 v10, {ob}'); a(f'v_cndmask_b32 v10, v10, {oa}, vcc' if oa <= 64 else 'BAD')
        a('v_add_u32 v10, v10, v9')
        a(f'ds_write_b32 v10, v{108+i}')
    a(f's_branch {lab2}')
    a.label(lab1)
    for s in range(8):
        a(f'ds_read_b128 v[{40+4*s}:{43+4*s}], v4 offset:{32*KG_RS + s*64}')
    for i in range(4): a(f'v_mov_b32 v{104+i}, 0')
    for s in range(8):
        a(f's_waitcnt lgkmcnt({7-s})')
        a(f'v_mfma_f32_16x16x32_bf16 v[104:107], v[{40+4*s}:{43+4*s}], v[{8+4*s}:{11+4*s}], v[104:107]')
    a('s_barrier')
    a('v_lshlrev_b32 v8, 9, v3'); a('v_lshl_add_u32 v8, v7, 3, v8'); a('v_add_u32 v8, 1024, v8'); a('v_lshl_add_u32 v8, v8, 2, v6')
    for i in range(4):
        a(f'ds_write_b32 v8, v{104+i} offset:{i*512}')
    a.label(lab2)
    a('s_waitcnt lgkmcnt(0)')
    a('s_barrier')
    stamp(a, 3)
    a('v_and_b32 v1, 127, v0')
    a('s_lshl_b32 s22, s3, 13'); a(f's_add_u32 s22, s22, {WS_KK}')
    a('v_lshlrev_b32 v4, 12, v2'); a('v_lshl_add_u32 v4, v1, 4, v4')
    for half in range(2):
        if half == 0:
            a('v_cmp_lt_u32 vcc, 31, v1'); a('v_cndmask_b32 v8, 0, 1, vcc')
            a('v_cmp_lt_u32 vcc, 63, v1'); a('v_cndmask_b32 v8, v8, 2, vcc')
        else:
            a('v_mov_b32 v8, 3')
        a('v_lshlrev_b32 v9, 3, v1')
        if half: a('v_add_u32 v9, 1024, v9')
        a('v_lshlrev_b32 v10, v8, -1')
        a('v_min_u32 v11, 1, v8')
        a('v_not_b32 v12, v10'); a('v_lshrrev_b32 v12, 1, v12')
        for e in range(8):
            a(f'v_add_u32 v13, {e}, v9')
            a('v_bfe_u32 v14, v13, v8, v11')
            a('v_add3_u32 v13, v13, v12, v14')
            a('v_and_b32 v13, v13, v10')
            a('v_lshl_add_u32 v13, v13, 2, v6')
            a(f'ds_read_b32 v{16+8*half+e}, v13')
    for half in range(2):
        a(f's_waitcnt lgkmcnt({8-8*half})')
        for e in range(4):
            a(f'v_cvt_pk_bf16_f32 v{32+4*half+e}, v{16+8*half+2*e}, v{17+8*half+2*e}')
        a(f'buffer_store_dwordx4 v[{32+4*half}:{35+4*half}], v4, s[24:27], s22 offen offset:{2048*half} sc1')
    a(f's_branch {ex}')

JOBS = [('k0_kgen', 288), ('k0_T', 64), ('k0_mod', 108), ('k0_P2', 72)]
def gen_k0(a, kidx=0):
    name = 'k0_kernel'
    kstart(a, name)
    n = dispatch(a, name, JOBS)
    ex = f'{name}_exit'
    fn = dict(k0_T=job_T, k0_mod=job_mod, k0_kgen=job_kgen, k0_P2=job_P2, k0_P3=job_P3)
    for lab, cnt in JOBS:
        a.label(lab); fn[lab](a, ex)
    kexit(a, name, kidx)
    return dict(name=name, grid=n, block=256, lds=max(32*RSL, 2*KG_CH), vgpr=112, accum=112, sgpr=102)
```

```python
from common import *
from gen_k0 import tile_load, tile_to_lds, tr_addr, RSL

CS = 4160
KC_END = 8*CS
HR = KC_END
CONV_LDS = HR + 4608

def job_conv(a, ex):
    a.c('---- job conv')
    a(f's_load_dwordx2 s[8:9], s[0:1], {KA["ws"]}')
    a(f's_load_dwordx2 s[6:7], s[0:1], {KA["Dskip"]}')
    a('s_lshr_b32 s12, s3, 1'); a('s_lshl_b32 s12, s12, 2')
    a('s_lshl_b32 s13, s3, 2')
    a('s_waitcnt lgkmcnt(0)')
    a('s_load_dword s14, s[6:7], s12')
    a(f's_add_u32 s15, s13, {WS_MOD}')
    a('s_load_dword s16, s[8:9], s15')
    a(f's_add_u32 s15, s13, {WS_MOD + 576*4}')
    a('s_load_dword s17, s[8:9], s15')
    a(f's_add_u32 s15, s13, {WS_MOD + 1152*4}')
    a('s_load_dword s18, s[8:9], s15')
    srd(a, 8, 8, WS_SIZE)
    a('v_lshlrev_b32 v1, 4, v0')
    a('v_subrev_u32 v2, 16, v1'); a('v_max_i32 v2, 0, v2')
    a('s_lshl_b32 s19, s3, 12'); a(f's_add_u32 s19, s19, {WS_KK}')
    a('buffer_load_dwordx4 v[8:11], v2, s[8:11], s19 offen')
    a('buffer_load_dwordx4 v[12:15], v1, s[8:11], s19 offen')
    a('v_lshrrev_b32 v3, 2, v0'); a('v_mul_u32_u24 v3, 36864, v3'); a('v_and_b32 v4, 3, v0'); a('v_lshl_add_u32 v3, v4, 4, v3')
    a('s_lshl_b32 s20, s3, 6'); a(f's_add_u32 s20, s20, {WS_XT}')
    a('buffer_load_dwordx4 v[16:19], v3, s[8:11], s20 offen')
    a('v_lshlrev_b32 v4, 5, v0')
    a(f's_mov_b32 s21, {WS_RHO}'); a(f's_mov_b32 s22, {WS_MU}')
    a('buffer_load_dwordx4 v[20:23], v4, s[8:11], s21 offen')
    a('buffer_load_dwordx4 v[24:27], v4, s[8:11], s21 offen offset:16')
    a('buffer_load_dwordx4 v[28:31], v4, s[8:11], s22 offen')
    a('buffer_load_dwordx4 v[32:35], v4, s[8:11], s22 offen offset:16')
    a('v_and_b32 v5, 63, v0'); a('v_lshrrev_b32 v6, 6, v0')
    a('v_and_b32 v7, 15, v5'); a('v_lshrrev_b32 v36, 4, v5')
    a('v_lshlrev_b32 v37, 9, v6'); a('v_lshl_add_u32 v37, v7, 4, v37'); a('v_lshl_add_u32 v37, v36, 2, v37')
    a('v_lshrrev_b32 v38, 5, v37'); a('v_mul_u32_u24 v38, 36864, v38'); a('v_and_b32 v39, 31, v37'); a('v_lshl_add_u32 v38, v39, 1, v38')
    a('buffer_load_dwordx2 v[40:41], v38, s[8:11], s20 offen')
    a(f's_add_u32 s23, s20, {8*36864}')
    a('buffer_load_dwordx2 v[42:43], v38, s[8:11], s23 offen')
    a('v_mov_b32 v44, 0'); a('v_mov_b32 v45, 0'); a('v_mov_b32 v46, 0'); a('v_mov_b32 v47, 0')
    a(f'v_mul_u32_u24 v48, {CS}, v0')
    a(f'v_lshlrev_b32 v49, 4, v0'); a(f'v_add_u32 v49, {HR + 4096 - 8*16}, v49')
    a('v_cmp_gt_u32 vcc, 8, v0'); a('v_cndmask_b32 v48, v49, v48, vcc')
    a('v_cmp_gt_u32 vcc, 38, v0')
    a('s_and_saveexec_b64 s[24:25], vcc')
    a('ds_write_b128 v48, v[44:47]')
    a('s_mov_b64 exec, s[24:25]')
    stamp(a, 0)
    a('s_waitcnt lgkmcnt(0)')
    a('s_and_b32 s15, s3, 1'); a('s_cmp_eq_u32 s15, 0'); a('s_cselect_b32 s15, 16, 0'); a('s_lshl_b32 s14, s14, s15'); a('s_and_b32 s14, s14, 0xffff0000')
    a('v_mov_b32 v50, s17')
    a('v_add_f32 v50, 1.0, v50'); a('v_cvt_pk_bf16_f32 v50, v50, v50'); a('v_and_b32 v50, 0xffff0000, v50'); a('v_mov_b32 v51, v50')
    a('v_mov_b32 v52, s16'); a('v_mov_b32 v53, s16')
    a('s_waitcnt vmcnt(7)')
    a('v_cmp_eq_u32 vcc, 0, v0')
    for i in range(4): a(f'v_cndmask_b32 v{8+i}, v{8+i}, 0, vcc')
    a('v_add_u32 v54, 16, v1')
    for c in range(8):
        off = 1 + c
        if off % 2 == 0:
            r = 8 + off//2
            if r % 2 == 0:
                a(f'ds_write_b128 v54, v[{r}:{r+3}] offset:{c*CS}')
            else:
                for i in range(4): a(f'v_mov_b32 v{56+i}, v{r+i}')
                a(f'ds_write_b128 v54, v[56:59] offset:{c*CS}')
        else:
            r = 8 + off//2
            t = 60 + 4*((c//2) % 2)
            for i in range(4): a(f'v_alignbit_b32 v{t+i}, v{r+i+1}, v{r+i}, 16')
            a(f'ds_write_b128 v54, v[{t}:{t+3}] offset:{c*CS}')
    stamp(a, 1)
    a('s_waitcnt vmcnt(2)')
    for i in range(4):
        a(f'v_lshlrev_b32 v{56+2*i}, 16, v{16+i}'); a(f'v_and_b32 v{57+2*i}, 0xffff0000, v{16+i}')
    for i in range(4):
        a(f'v_pk_fma_f32 v[{56+2*i}:{57+2*i}], v[{56+2*i}:{57+2*i}], v[{20+2*i}:{21+2*i}], v[{28+2*i}:{29+2*i}] neg_lo:[0,0,1] neg_hi:[0,0,1]')
    for i in range(4):
        a(f'v_pk_fma_f32 v[{56+2*i}:{57+2*i}], v[{56+2*i}:{57+2*i}], v[50:51], v[52:53]')
    for i in range(4):
        a(f'v_cvt_pk_bf16_f32 v{64+i}, v{56+7-2*i}, v{56+6-2*i}')
    a(f'v_sub_u32 v55, {HR + 4080}, v1')
    a('ds_write_b128 v55, v[64:67]')
    a('s_waitcnt lgkmcnt(0)')
    a('s_barrier')
    stamp(a, 2)
    AF = 68
    FF = 100
    ACC = 0
    a('v_and_b32 v56, 7, v7'); a(f'v_mul_u32_u24 v56, {CS}, v56')
    a('v_and_b32 v57, 8, v7'); a('v_lshl_add_u32 v57, v36, 3, v57'); a('v_lshl_add_u32 v57, v6, 6, v57')
    a('v_lshl_add_u32 v56, v57, 1, v56')
    a('v_lshlrev_b32 v57, 4, v7'); a('v_sub_u32 v57, 240, v57'); a('v_lshl_add_u32 v57, v36, 3, v57'); a('v_lshl_add_u32 v57, v6, 6, v57')
    a(f'v_lshlrev_b32 v57, 1, v57'); a(f'v_add_u32 v57, {HR}, v57')
    for i in range(32): a(f'v_accvgpr_write_b32 a{i}, 0')
    for ph in range(2):
        po = ph*64
        order = []
        for m in range(8):
            a(f'ds_read_b128 v[{FF+4*m}:{FF+4*m+3}], v57 offset:{(7-m)*512 + po}')
            a(f'ds_read_b128 v[{AF+4*m}:{AF+4*m+3}], v56 offset:{m*512 + po}')
        for s_ in range(8):
            a(f's_waitcnt lgkmcnt({min(15, 14 - 2*s_)})')
            for m in range(s_+1):
                for u in range(s_+1):
                    if max(m, u) != s_: continue
                    n = m + u
                    if n > 7: continue
                    a(f'v_mfma_f32_16x16x32_bf16 a[{4*n}:{4*n+3}], v[{AF+4*m}:{AF+4*m+3}], v[{FF+4*u}:{FF+4*u+3}], a[{4*n}:{4*n+3}]')
    stamp(a, 3)
    a('s_barrier')
    a('v_lshlrev_b32 v56, 4, v5'); a('v_lshl_add_u32 v56, v6, 13, v56')
    a('s_nop 4')
    for n in range(8):
        for i in range(4): a(f'v_accvgpr_read_b32 v{68+4*n+i}, a{4*n+i}')
    for n in range(8):
        a(f'ds_write_b128 v56, v[{68+4*n}:{71+4*n}] offset:{n*1024}')
    a('s_waitcnt lgkmcnt(0)')
    a('s_barrier')
    a('v_lshlrev_b32 v56, 4, v5'); a('v_lshl_add_u32 v56, v6, 11, v56')
    for src in range(4):
        for j in range(2):
            a(f'ds_read_b128 v[{68+16*j+4*src}:{71+16*j+4*src}], v56 offset:{src*8192 + j*1024}')
    a('v_lshlrev_b32 v57, 1, v37'); a(f'v_sub_u32 v57, {HR + 2044*2}, v57')
    a('ds_read_b64 v[100:101], v57')
    a('v_subrev_u32 v57, 512, v57')
    a('ds_read_b64 v[102:103], v57')
    a('s_and_b32 s24, s3, 3'); a('s_lshr_b32 s25, s3, 3'); a('s_and_b32 s25, s25, 1'); a('s_lshl_b32 s25, s25, 2'); a('s_add_u32 s24, s24, s25'); a('s_lshl_b32 s24, s24, 1')
    a('v_and_b32 v58, 7, v7'); a('v_lshlrev_b32 v58, 1, v58'); a('v_lshrrev_b32 v59, 1, v36'); a('v_add_u32 v58, v58, v59')
    a('v_xor_b32 v58, s24, v58'); a('v_lshlrev_b32 v58, 4, v58'); a('v_and_b32 v59, 1, v36'); a('v_lshl_add_u32 v58, v59, 3, v58')
    a('v_lshrrev_b32 v59, 3, v7'); a('v_lshl_add_u32 v59, v6, 2, v59')
    a(f'v_mul_u32_u24 v59, {576*256}, v59'); a('v_add_u32 v58, v58, v59')
    a('s_lshl_b32 s25, s3, 8'); a(f's_add_u32 s25, s25, {WS_X1T}')
    a('s_waitcnt vmcnt(0) lgkmcnt(0)')
    for j in range(2):
        b = 68 + 16*j
        for i in range(0, 4, 2):
            a(f'v_pk_add_f32 v[{b+i}:{b+i+1}], v[{b+i}:{b+i+1}], v[{b+4+i}:{b+5+i}]')
            a(f'v_pk_add_f32 v[{b+8+i}:{b+9+i}], v[{b+8+i}:{b+9+i}], v[{b+12+i}:{b+13+i}]')
        for i in range(0, 4, 2):
            a(f'v_pk_add_f32 v[{b+i}:{b+i+1}], v[{b+i}:{b+i+1}], v[{b+8+i}:{b+9+i}]')
        hr = 100 + 2*j; xr = 40 + 2*j
        a(f'v_and_b32 v104, 0xffff0000, v{hr+1}'); a(f'v_lshlrev_b32 v105, 16, v{hr+1}')
        a(f'v_and_b32 v106, 0xffff0000, v{hr}'); a(f'v_lshlrev_b32 v107, 16, v{hr}')
        for r in range(4):
            a(f'v_fma_f32 v{b+r}, v{104+r}, s14, v{b+r}')
        a(f'v_lshlrev_b32 v104, 16, v{xr}'); a(f'v_and_b32 v105, 0xffff0000, v{xr}')
        a(f'v_lshlrev_b32 v106, 16, v{xr+1}'); a(f'v_and_b32 v107, 0xffff0000, v{xr+1}')
        for r in range(4):
            a(f'v_fma_f32 v{b+r}, v{b+r}, s18, v{104+r}')
        a(f'v_cvt_pk_bf16_f32 v{108+2*j}, v{b}, v{b+1}'); a(f'v_cvt_pk_bf16_f32 v{109+2*j}, v{b+2}, v{b+3}')
        if j == 0:
            a(f'buffer_store_dwordx2 v[108:109], v58, s[8:11], s25 offen sc1')
        else:
            a(f's_add_u32 s25, s25, {2*576*256}')
            a(f'buffer_store_dwordx2 v[110:111], v58, s[8:11], s25 offen sc1')
    a(f's_branch {ex}')

def job_P1(a, ex):
    a.c('---- job P1: w_in fold + re-layout')
    a(f's_load_dwordx2 s[4:5], s[0:1], {KA["w_in"]}')
    a(f's_load_dwordx2 s[8:9], s[0:1], {KA["ws"]}')
    a('s_waitcnt lgkmcnt(0)')
    srd(a, 4, 4, 576*9216)
    srd(a, 8, 8, WS_SIZE)
    a('s_lshr_b32 s20, s3, 3'); a('s_and_b32 s21, s3, 7')
    a(f's_mul_i32 s12, s20, {32*9216}'); a('s_mul_i32 s13, s21, 1152'); a('s_add_u32 s12, s12, s13')
    tile_load(a, 4, 's12', 9216)
    a('v_lshlrev_b32 v4, 2, v1'); a('s_lshl_b32 s13, s20, 7'); a(f's_add_u32 s13, s13, {WS_MOD + 4*576*4}')
    a('buffer_load_dword v48, v4, s[8:11], s13 offen')
    a('s_waitcnt vmcnt(0)')
    a('v_add_f32 v48, 1.0, v48'); a('v_cvt_pk_bf16_f32 v48, v48, v48'); a('v_and_b32 v48, 0xffff0000, v48'); a('v_mov_b32 v49, v48')
    for i in range(36):
        t = 52 + 2*(i % 4)
        a(f'v_lshlrev_b32 v{t}, 16, v{8+i}'); a(f'v_and_b32 v{t+1}, 0xffff0000, v{8+i}')
        a(f'v_pk_mul_f32 v[{t}:{t+1}], v[{t}:{t+1}], v[48:49]')
        a(f'v_cvt_pk_bf16_f32 v{8+i}, v{t}, v{t+1}')
    tile_to_lds(a)
    a('s_waitcnt lgkmcnt(0)')
    a('s_barrier')
    tr_addr(a, 3, 4)
    a('v_lshlrev_b32 v50, 4, v4')
    a('v_readfirstlane_b32 s14, v5')
    a('s_mul_i32 s22, s21, 36'); a('s_add_u32 s22, s22, s14')
    for m in range(9):
        a(f's_add_u32 s15, s22, {4*m}')
        a('s_cmp_lt_u32 s15, 144'); a('s_cselect_b32 s16, 1, 0'); a('s_cselect_b32 s17, 0, 144'); a('s_sub_u32 s15, s15, s17')
        a('s_mul_i32 s17, s15, 57'); a('s_lshr_b32 s17, s17, 9')
        a('s_mul_i32 s18, s17, 9'); a('s_sub_u32 s18, s15, s18')
        a('s_lshl_b32 s17, s17, 1'); a('s_add_u32 s17, s17, s16'); a('s_mul_i32 s17, s17, 18'); a('s_add_u32 s17, s17, s20')
        a('s_mul_i32 s17, s17, 9216'); a('s_lshl_b32 s18, s18, 10'); a('s_add_u32 s17, s17, s18'); a(f's_add_u32 s17, s17, {WS_W1T}')
        a(f's_waitcnt lgkmcnt({min(15, 2*(8-m))})')
        a(f'buffer_store_dwordx4 v[{8+4*m}:{11+4*m}], v50, s[8:11], s17 offen sc1')
    a(f's_branch {ex}')

def job_CS(a, ex):
    a.c('---- job CS')
    a(f's_load_dwordx2 s[6:7], s[0:1], {KA["w_in"]}')
    a(f's_load_dwordx2 s[16:17], s[0:1], {KA["ws"]}')
    a('v_and_b32 v1, 3, v0')
    a('v_lshrrev_b32 v2, 2, v0')
    a('v_mul_u32_u24 v3, 9216, v2')
    a('v_lshl_add_u32 v3, v1, 4, v3')
    a('s_lshl_b32 s13, s3, 6')
    a('v_lshlrev_b32 v4, 2, v2')
    a('s_waitcnt lgkmcnt(0)')
    srd(a, 8, 6, 576*9216)
    srd(a, 16, 16, WS_SIZE)
    a(f's_mov_b32 s20, {WS_MOD + 3*576*4}'); a(f's_mov_b32 s21, {WS_MOD + 4*576*4}')
    for i in range(9):
        a(f'buffer_load_dword v{48+i}, v4, s[16:19], s20 offen offset:{i*256}')
        a(f'buffer_load_dword v{58+i}, v4, s[16:19], s21 offen offset:{i*256}')
    for i in range(9):
        a(f'buffer_load_dwordx4 v[{8+4*i}:{11+4*i}], v3, s[8:11], s13 offen')
        if i < 8: a(f's_add_u32 s13, s13, {64*9216}')
    for i in range(16): a(f'v_mov_b32 v{70+i}, 0')
    a('v_mov_b32 v90, 0x00003f80'); a('v_mov_b32 v91, 0x3f800000')
    a('s_waitcnt vmcnt(9)')
    for i in range(9):
        a(f'v_add_f32 v{58+i}, 1.0, v{58+i}'); a(f'v_cvt_pk_bf16_f32 v{58+i}, v{58+i}, v{58+i}'); a(f'v_and_b32 v{58+i}, 0xffff0000, v{58+i}')
    for i in range(9):
        a(f's_waitcnt vmcnt({8-i})')
        for k in range(4):
            r = 8+4*i+k
            t = 92 + 2*(k % 2)
            a(f'v_lshlrev_b32 v{t}, 16, v{r}'); a(f'v_and_b32 v{t+1}, 0xffff0000, v{r}')
            a(f'v_fmac_f32 v{78+2*k}, v{t}, v{48+i}'); a(f'v_fmac_f32 v{79+2*k}, v{t+1}, v{48+i}')
            a(f'v_mul_f32 v{t}, v{t}, v{58+i}'); a(f'v_mul_f32 v{t+1}, v{t+1}, v{58+i}')
            a(f'v_cvt_pk_bf16_f32 v{t}, v{t}, v{t+1}')
            a(f'v_dot2c_f32_bf16 v{70+2*k}, v{t}, v90'); a(f'v_dot2c_f32_bf16 v{71+2*k}, v{t}, v91')
    for m in (4, 8):
        for k in range(16):
            a(f'v_add_f32_dpp v{70+k}, v{70+k}, v{70+k} row_ror:{m} row_mask:0xf bank_mask:0xf')
    a('v_lshrrev_b32 v5, 4, v0'); a('v_lshlrev_b32 v5, 7, v5'); a('v_lshl_add_u32 v5, v1, 5, v5')
    a('v_bfe_u32 v6, v0, 2, 2')
    a('v_cmp_eq_u32 vcc, 0, v6')
    a('s_and_saveexec_b64 s[14:15], vcc')
    a('ds_write_b128 v5, v[70:73]'); a('ds_write_b128 v5, v[74:77] offset:16')
    a('ds_write_b128 v5, v[78:81] offset:2048'); a('ds_write_b128 v5, v[82:85] offset:2064')
    a('s_mov_b64 exec, s[14:15]')
    a('s_waitcnt lgkmcnt(0)')
    a('s_barrier')
    a('v_cmp_gt_u32 vcc, 64, v0')
    a('s_and_saveexec_b64 s[14:15], vcc')
    a(f's_cbranch_execz {ex}')
    a('v_and_b32 v5, 31, v0'); a('v_lshlrev_b32 v5, 2, v5'); a('v_lshrrev_b32 v6, 5, v0'); a('v_lshl_add_u32 v7, v6, 11, v5')
    for i in range(16):
        a(f'ds_read_b32 v{8+i}, v7 offset:{i*128}')
    a('s_waitcnt lgkmcnt(0)')
    for st in (8, 4, 2, 1):
        for i in range(st):
            a(f'v_add_f32 v{8+i}, v{8+i}, v{8+i+st}')
    a(f'v_mul_u32_u24 v6, {WS_BIAS - WS_CS}, v6'); a('v_add_u32 v5, v5, v6')
    a('s_lshl_b32 s13, s3, 7'); a(f's_add_u32 s13, s13, {WS_CS}')
    a('buffer_store_dword v8, v5, s[16:19], s13 offen sc1')
    a(f's_branch {ex}')

JOBS = [('k1_conv', 576), ('k1_P1', 144), ('k1_CS', 144)]
def gen_k1(a, kidx=1):
    name = 'k1_kernel'
    kstart(a, name)
    n = dispatch(a, name, JOBS)
    ex = f'{name}_exit'
    fn = dict(k1_conv=job_conv, k1_P1=job_P1, k1_CS=job_CS)
    for lab, cnt in JOBS:
        a.label(lab); fn[lab](a, ex)
    kexit(a, name, kidx)
    return dict(name=name, grid=n, block=256, lds=max(32*RSL, CONV_LDS), vgpr=132+32, accum=132, sgpr=102)
```

```python
from common import *

NX, NW = 4, 5
XSLOT, WSLOT = 16384, 18432
XR = 0
WR = NX*XSLOT
SC = WR + NW*WSLOT
KB_LDS = SC + 4*576
NST = 18
GC0 = -2.0*0.7978845608028654*LOG2E
GC1 = GC0*0.044715
DO_P3 = [True]
OPT = dict(no_stats=False, no_gelu=False, no_mfma=False, xf_v=False)

def gen_kb(a, kidx=2):
    name = 'kb_kernel'
    kstart(a, name)
    S = Stream(a)
    a('s_cmp_ge_u32 s2, 256'); a(f's_cbranch_scc1 {name}_exit')
    a(f's_load_dwordx2 s[8:9], s[0:1], {KA["ws"]}')
    a(f's_load_dwordx2 s[4:5], s[0:1], {KA["w_sp"]}')
    xcd_tile(a, 16, 17, 18, 19)
    a('v_and_b32 v1, 63, v0'); a('v_lshrrev_b32 v2, 6, v0')
    a('v_readfirstlane_b32 s20, v2')
    a('v_lshlrev_b32 v3, 4, v1')
    a('v_add_u32 v4, 0x10000, v3'); a('v_add_u32 v5, 0x20000, v3')
    a('v_and_b32 v6, 15, v1'); a('v_lshrrev_b32 v7, 4, v1')
    a('v_lshrrev_b32 v10, 2, v6'); a('v_and_b32 v11, 3, v1')
    a('v_and_b32 v12, 1, v7'); a('v_lshl_add_u32 v12, v12, 2, v10'); a('v_lshlrev_b32 v12, 1, v12')
    a('v_lshl_add_u32 v13, v7, 3, v10'); a('v_lshlrev_b32 v13, 8, v13')
    a('v_and_b32 v14, 1, v11'); a('v_lshl_add_u32 v13, v14, 3, v13')
    a('v_lshrrev_b32 v14, 1, v11'); a('v_lshl_add_u32 v14, v2, 2, v14')
    a('v_xor_b32 v15, v14, v12'); a('v_lshl_add_u32 v8, v15, 4, v13')
    a('v_add_u32 v14, 2, v14'); a('v_xor_b32 v15, v14, v12'); a('v_lshl_add_u32 v9, v15, 4, v13')
    a('s_waitcnt lgkmcnt(0)')
    srd(a, 8, 8, WS_SIZE)
    srd(a, 4, 4, 2048*4096)
    a('s_mul_i32 s21, s20, 5'); a('s_lshl_b32 s22, s20, 2'); a('s_add_u32 s22, s22, 2')
    a('s_movk_i32 s23, 3072')
    a('s_cmp_lt_u32 s20, 2'); a('s_cselect_b32 s21, s21, s22')
    a('s_cselect_b32 s23, 4096, s23')
    a('s_cselect_b64 s[24:25], -1, 1')
    a('s_lshl_b32 s21, s21, 10')
    a(f's_mul_i32 s26, s17, {36*9216}'); a(f's_add_u32 s26, s26, {WS_W1T}'); a('s_add_u32 s26, s26, s21')
    a('s_add_u32 s27, s21, s23')
    a(f's_mul_i32 s28, s16, {576*256}'); a(f's_add_u32 s28, s28, {WS_X1T}'); a('s_lshl_b32 s29, s20, 12'); a('s_add_u32 s28, s28, s29')
    def lds_base(addr):
        if addr < 0x10000: return 'v3', addr
        if addr < 0x20000: return 'v4', addr - 0x10000
        return 'v5', addr - 0x20000
    def dma_W(n):
        slot = WR + (n % NW)*WSLOT
        ops = []
        ops.append(([f's_add_u32 m0, s21, {slot}', f's_add_u32 s30, s26, {n*WSLOT}'], 'buffer_load_dwordx4 v3, s[8:11], s30 offen lds', []))
        for k in range(1, 4):
            ops.append(([], f'buffer_load_dwordx4 v3, s[8:11], s30 offen offset:{k*1024} lds', []))
        ops.append(([f's_add_u32 m0, s27, {slot}', 's_add_u32 s31, s30, s23', 's_mov_b64 exec, s[24:25]'], 'buffer_load_dwordx4 v3, s[8:11], s31 offen lds', ['s_mov_b64 exec, -1']))
        return [(p, t, q, ('W', n)) for p, t, q in ops]
    def dma_X(m):
        slot = XR + (m % NX)*XSLOT
        ops = [([f's_add_u32 m0, s29, {slot}', f's_add_u32 s32, s28, {m*XSLOT}'], 'buffer_load_dwordx4 v3, s[8:11], s32 offen lds', [])]
        for k in range(1, 4):
            ops.append(([], f'buffer_load_dwordx4 v3, s[8:11], s32 offen offset:{k*1024} lds', []))
        return [(p, t, q, ('X', m)) for p, t, q in ops]
    def issue(op):
        p, t, q, tag = op
        for l in p: a(l)
        S.vmem(t, tag)
        for l in q: a(l)
    for n in range(NW-1):
        if n < NX-1:
            for op in dma_X(n): issue(op)
        for op in dma_W(n): issue(op)
    a('s_mul_i32 s33, s17, 576')
    a('s_cmp_lt_u32 s20, 2'); a(f's_cselect_b32 s34, {2304*4}, 0'); a('s_add_u32 s33, s33, s34')
    a('s_and_b32 s34, s20, 1'); a(f's_mul_i32 s34, s34, {WS_BIAS - WS_CS}'); a('s_add_u32 s33, s33, s34'); a(f's_add_u32 s33, s33, {WS_CS}')
    a('s_mul_i32 s34, s20, 576'); a(f's_add_u32 m0, s34, {SC}')
    a('s_mov_b32 exec_hi, 0xf')
    S.vmem('buffer_load_dwordx4 v3, s[8:11], s33 offen lds', 'CB')
    a('s_mov_b64 exec, -1')
    P3R = 176
    if DO_P3[0]:
        a('s_lshl_b32 s35, s2, 2'); a('s_add_u32 s35, s35, s20')
        a('s_lshr_b32 s36, s35, 3'); a('s_and_b32 s37, s35, 7')
        a('v_lshlrev_b32 v16, 12, v6'); a('v_lshl_add_u32 v16, v7, 4, v16')
        a('s_lshl_b32 s38, s36, 16'); a('s_lshl_b32 s39, s37, 9'); a('s_add_u32 s38, s38, s39')
        a('s_lshr_b32 s39, s36, 1'); a('s_lshl_b32 s39, s39, 17'); a('s_and_b32 s40, s36, 1'); a('s_lshl_b32 s40, s40, 10'); a('s_add_u32 s39, s39, s40')
        a('s_lshl_b32 s40, s37, 14'); a('s_add_u32 s39, s39, s40'); a(f's_add_u32 s39, s39, {WS_WSP}')
    XF, WF, ACC1 = 0, 144, 180
    ACC2 = 100
    XS = 20
    SUM, SQ = 36, 38
    ONES = 17
    a(f'v_mov_b32 v{ONES}, 0x3f803f80')
    for i in range(4): a(f'v_mov_b32 v{SUM+i}, 0')
    for i in range(72): a(f'v_mov_b32 v{ACC2+i}, 0')
    for i in range(72): a(f'v_accvgpr_write_b32 a{ACC1+i}, 0')
    def rdW(g, ii):
        n, u = g >> 1, g & 1
        b, o = lds_base(WR + (n % NW)*WSLOT + u*9216 + ii*1024)
        S.ds(f'ds_read_b128 a[{WF+4*ii}:{WF+4*ii+3}], {b} offset:{o}', ('w', g, ii))
    def rdX(Sx):
        m, u = Sx >> 1, Sx & 1
        base = XR + (m % NX)*XSLOT + u*8192
        ops = []
        for jj in range(2):
            for h in range(2):
                r = XF + (Sx*2 + jj)*4 + 2*h
                ops.append((f'ds_read_b64_tr_b16 a[{r}:{r+1}], v{8+jj} offset:{base + h*1024}', ('x', Sx)))
        for jj in range(2):
            for h in range(2):
                r = XS + (Sx % 2)*8 + jj*4 + 2*h
                ops.append((f'ds_read_b64_tr_b16 v[{r}:{r+1}], v{8+jj} offset:{base + h*1024}', ('xs', Sx)))
        return ops
    def stats_ops(Sx):
        ops = []
        for jj in range(2):
            for k in range(4):
                r = XS + (Sx % 2)*8 + jj*4 + k
                ops.append(f'v_dot2c_f32_bf16 v{SUM+jj}, v{r}, v{ONES}')
                ops.append(f'v_dot2c_f32_bf16 v{SQ+jj}, v{r}, v{r}')
        return ops
    S.wait_vm(('X', 0), ('W', 0), 'CB')
    a('s_barrier')
    stamp(a, 0)
    for t, tag in rdX(0): S.ds(t, tag)
    for ii in range(9): rdW(0, ii)

    RM = 40
    CBR = 44
    T = 60
    SA, QA = 76, 80
    def stats_final():
        ops = []
        for r in (SUM, SUM+1, SQ, SQ+1):
            for sw in ('v_permlane32_swap_b32', 'v_permlane16_swap_b32'):
                ops += [f'v_mov_b32 v{T}, v{r}', 's_nop 1', f'{sw} v{r}, v{T}', f'v_add_f32 v{r}, v{r}, v{T}']
        for jj in range(2):
            ops += [f'v_mul_f32 v{SUM+jj}, {H(1/576)}, v{SUM+jj}', f'v_mul_f32 v{SQ+jj}, {H(1/576)}, v{SQ+jj}',
                    f'v_fma_f32 v{SQ+jj}, -v{SUM+jj}, v{SUM+jj}, v{SQ+jj}', f'v_max_f32 v{SQ+jj}, 0, v{SQ+jj}',
                    f'v_add_f32 v{SQ+jj}, {H(1e-5)}, v{SQ+jj}', f'v_rsq_f32 v{RM+2*jj}, v{SQ+jj}', 's_nop 0',
                    f'v_mul_f32 v{RM+2*jj+1}, v{SUM+jj}, v{RM+2*jj}']
        return ops
    def fold_ops(src, jj, cb, t):
        rm = RM + 2*jj
        ops = []
        for p in range(2):
            ops.append(f'v_pk_fma_f32 v[{t+2*p}:{t+2*p+1}], v[{rm}:{rm+1}], v[{cb+2*p}:{cb+2*p+1}], v[{cb+4+2*p}:{cb+5+2*p}] op_sel:[1,0,0] op_sel_hi:[1,1,1] neg_lo:[1,0,0] neg_hi:[1,0,0]')
        for p in range(2):
            ops.append(f'v_pk_fma_f32 v[{src+2*p}:{src+2*p+1}], v[{src+2*p}:{src+2*p+1}], v[{rm}:{rm+1}], v[{t+2*p}:{t+2*p+1}] op_sel:[0,0,0] op_sel_hi:[1,0,1]')
        return ops
    def gelu_ops(src, t):
        ops = []
        for p in range(2): ops.append(f'v_pk_mul_f32 v[{t+2*p}:{t+2*p+1}], v[{src+2*p}:{src+2*p+1}], v[{src+2*p}:{src+2*p+1}]')
        for p in range(2): ops.append(f'v_pk_fma_f32 v[{t+2*p}:{t+2*p+1}], v[{t+2*p}:{t+2*p+1}], v[84:85], v[84:85] op_sel:[0,1,0] op_sel_hi:[1,1,0]')
        for p in range(2): ops.append(f'v_pk_mul_f32 v[{t+2*p}:{t+2*p+1}], v[{t+2*p}:{t+2*p+1}], v[{src+2*p}:{src+2*p+1}]')
        for k in range(4): ops.append(f'v_exp_f32 v{t+k}, v{t+k}')
        for p in range(2): ops.append(f'v_pk_add_f32 v[{t+2*p}:{t+2*p+1}], v[{t+2*p}:{t+2*p+1}], s[46:47]')
        for k in range(4): ops.append(f'v_rcp_f32 v{t+k}, v{t+k}')
        for p in range(2): ops.append(f'v_pk_mul_f32 v[{src+2*p}:{src+2*p+1}], v[{src+2*p}:{src+2*p+1}], v[{t+2*p}:{t+2*p+1}]')
        return ops
    a(f'v_mov_b32 v84, {H(GC0)}'); a(f'v_mov_b32 v85, {H(GC1)}')
    a('s_mov_b32 s46, 1.0'); a('s_mov_b32 s47, 1.0')
    for i in range(8): a(f'v_mov_b32 v{SA+i}, 0')
    a(f'v_lshlrev_b32 v18, 4, v7'); a(f'v_add_u32 v18, {SC - 0x20000}, v18'); a('v_add_u32 v18, 0x20000, v18')
    def z2_frag_items(ii):
        cb = CBR + 8*(ii % 2)
        items = []
        for jj in range(2):
            src = ACC2 + (ii*2 + jj)*4
            t = T + 8*jj
            ops = fold_ops(src, jj, cb, t) + gelu_ops(src, t + 4)
            for p in range(2):
                ops.append(f'v_pk_add_f32 v[{SA+2*jj}:{SA+2*jj+1}], v[{SA+2*jj}:{SA+2*jj+1}], v[{src+2*p}:{src+2*p+1}]')
                ops.append(f'v_pk_fma_f32 v[{QA+2*jj}:{QA+2*jj+1}], v[{src+2*p}:{src+2*p+1}], v[{src+2*p}:{src+2*p+1}], v[{QA+2*jj}:{QA+2*jj+1}]')
            items.append(ops)
        out = []
        for x, y in zip(items[0], items[1]): out += [x, y]
        return out
    def cb_reads(ii, off):
        cb = CBR + 8*(ii % 2)
        return [(f'ds_read_b128 v[{cb}:{cb+3}], v18 offset:{off + ii*64}', ('cb', off, ii)),
                (f'ds_read_b128 v[{cb+4}:{cb+7}], v18 offset:{off + 576 + ii*64}', ('cb', off, ii))]

    NG = 36
    valu_q = []
    vm_q = []
    p3_loaded = False
    for g in range(NG):
        n, u = g >> 1, g & 1
        pass2 = g >= 18
        Sx = g if not pass2 else g - 18
        acc_is2 = not pass2
        lds_q = []
        if g == 18: stamp(a, 1)
        if u == 1:
            if n + 1 < NST:
                tags = [('W', n+1)]
                if n + 1 < 9: tags.append(('X', n+1))
                S.wait_vm(*tags)
                a('s_barrier')
                if n + NW - 1 < NST: vm_q += dma_W(n + NW - 1)
                if n + NX - 1 < 9: vm_q += dma_X(n + NX - 1)
        if not pass2 and Sx + 1 < 18:
            lds_q += rdX(Sx + 1)
        if not pass2:
            if not OPT['no_stats']: valu_q += [('w', ('xs', Sx))] + [('v', t) for t in stats_ops(Sx)]
        if g == 2 and DO_P3[0]:
            for i in range(8):
                vm_q.append(([], f'buffer_load_dwordx4 v[{P3R+4*i}:{P3R+4*i+3}], v16, s[4:7], s38 offen' + (f' offset:{i*64}' if i else ''), [], ('P3', i)))
        if g == 18:
            valu_q += [('v', t) for t in stats_final()]
            for t, tag in cb_reads(0, 0): valu_q.append(('d', t, tag))
            for ii in range(9):
                if ii + 1 < 9:
                    for t, tag in cb_reads(ii+1, 0): valu_q.append(('d', t, tag))
                valu_q.append(('w', ('cb', 0, ii)))
                if not OPT['no_gelu']: valu_q += [('v', t) for t in z2_frag_items(ii)]
        if g == 24 and DO_P3[0]:
            P3Q = []
            for i in range(8):
                r = P3R + 4*i
                P3Q.append(('wv', ('P3', i)))
                P3Q += [('v', f'v_permlane16_swap_b32 v{r}, v{r+2}'), ('v', f'v_permlane16_swap_b32 v{r+1}, v{r+3}'),
                        ('v', f'v_permlane32_swap_b32 v{r}, v{r+2}'), ('v', f'v_permlane32_swap_b32 v{r+1}, v{r+3}'),
                        ('m', [f's_add_u32 s40, s39, {i*2048}'], f'buffer_store_dwordx4 v[{r}:{r+3}], v3, s[8:11], s40 offen sc1', ('P3s', i))]
            p3_pending = P3Q
        groups_left = (NG - g)*9 if pass2 else (18 - g)*9
        for ii in range(9):
            if ii == 0:
                S.wait_lg(('x', Sx)) if not pass2 else None
            S.wait_lg(('w', g, ii))
            for jj in range(2):
                xr = XF + (Sx*2 + jj)*4
                if acc_is2: acc = f'v[{ACC2+(ii*2+jj)*4}:{ACC2+(ii*2+jj)*4+3}]'
                else: acc = f'a[{ACC1+(ii*2+jj)*4}:{ACC1+(ii*2+jj)*4+3}]'
                if not OPT['no_mfma']: a(f'v_mfma_f32_16x16x32_bf16 {acc}, a[{WF+4*ii}:{WF+4*ii+3}], a[{xr}:{xr+3}], {acc}')
            if g + 1 < NG: rdW(g + 1, ii)
            if lds_q:
                t, tag = lds_q.pop(0); S.ds(t, tag)
            if vm_q:
                issue(vm_q.pop(0))
            if pass2:
                rem = (NG - g)*9 - ii
                k = -(-len(valu_q) // max(rem - 9, 1))
            else:
                k = -(-len(valu_q) // (9 - ii))
            for _ in range(k):
                if not valu_q: break
                it = valu_q.pop(0)
                if it[0] == 'v': a(it[1])
                elif it[0] == 'w': S.wait_lg(it[1])
                elif it[0] == 'd': S.ds(it[1], it[2])
            if pass2 and g >= 24 and DO_P3[0] and p3_pending and ii % 2 == 0:
                for _ in range(3):
                    if not p3_pending: break
                    it = p3_pending.pop(0)
                    if it[0] == 'v': a(it[1])
                    elif it[0] == 'wv': S.wait_vm(it[1])
                    elif it[0] == 'm':
                        for l in it[1]: a(l)
                        S.vmem(it[2], it[3])
        while lds_q:
            t, tag = lds_q.pop(0); S.ds(t, tag)
    assert not valu_q and not vm_q, (len(valu_q), len(vm_q))
    if DO_P3[0]: assert not p3_pending
    stamp(a, 2)
    for jj in range(2):
        a(f'v_add_f32 v{SA+2*jj}, v{SA+2*jj}, v{SA+2*jj+1}'); a(f'v_add_f32 v{QA+2*jj}, v{QA+2*jj}, v{QA+2*jj+1}')
    for r in (SA, SA+2, QA, QA+2):
        for sw in ('v_permlane32_swap_b32', 'v_permlane16_swap_b32'):
            a(f'v_mov_b32 v{T}, v{r}'); a(f'{sw} v{r}, v{T}'); a(f'v_add_f32 v{r}, v{r}, v{T}')
    a(f'v_mov_b32 v{SA+1}, v{QA}'); a(f'v_mov_b32 v{SA+3}, v{QA+2}')
    a('v_lshl_add_u32 v60, v2, 5, v6'); a('v_lshlrev_b32 v60, 7, v60')
    a(f's_lshl_b32 s48, s16, 14'); a('s_lshl_b32 s49, s17, 3'); a('s_add_u32 s48, s48, s49'); a(f's_add_u32 s48, s48, {WS_Z2ST}')
    a('s_mov_b64 exec, 0xffff')
    S.vmem(f'buffer_store_dwordx2 v[{SA}:{SA+1}], v60, s[8:11], s48 offen sc1', 'pub')
    S.vmem(f'buffer_store_dwordx2 v[{SA+2}:{SA+3}], v60, s[8:11], s48 offen offset:2048 sc1', 'pub')
    a('s_mov_b64 exec, -1')
    S.wait_vm_all()
    a('s_barrier')
    lab = a.newlabel('kb_noatom')
    a('s_cmp_lg_u32 s20, 0'); a(f's_cbranch_scc1 {lab}')
    a('s_lshl_b32 s49, s16, 8'); a(f's_add_u32 s49, s49, {WS_CNT}')
    a('v_mov_b32 v61, 1'); a('v_mov_b32 v62, 0')
    a('s_mov_b64 exec, 1')
    a('buffer_atomic_add v61, v62, s[8:11], s49 offen sc1')
    a('s_mov_b64 exec, -1')
    a.label(lab)
    for t, tag in cb_reads(0, 1152): S.ds(t, tag)
    a('s_lshl_b32 s50, s2, 2'); a('s_add_u32 s50, s50, s20'); a('s_mul_i32 s50, s50, 9216'); a(f's_add_u32 s50, s50, {WS_Z1}')
    for ii in range(9):
        if ii + 1 < 9:
            for t, tag in cb_reads(ii+1, 1152): S.ds(t, tag)
        for jj in range(2):
            for k in range(4): a(f'v_accvgpr_read_b32 v{20+4*jj+k}, a{ACC1+(ii*2+jj)*4+k}')
        S.wait_lg(('cb', 1152, ii))
        cb = CBR + 8*(ii % 2)
        for x, y in zip(fold_ops(20, 0, cb, T), fold_ops(24, 1, cb, T+8)):
            a(x); a(y)
        pk = 28 + 4*(ii % 2)
        a(f'v_cvt_pk_bf16_f32 v{pk}, v20, v21'); a(f'v_cvt_pk_bf16_f32 v{pk+1}, v22, v23')
        a(f'v_cvt_pk_bf16_f32 v{pk+2}, v24, v25'); a(f'v_cvt_pk_bf16_f32 v{pk+3}, v26, v27')
        a(f's_add_u32 s51, s50, {ii*1024}')
        S.vmem(f'buffer_store_dwordx4 v[{pk}:{pk+3}], v3, s[8:11], s51 offen sc1', 'z1')
    lab = a.newlabel('kb_nopoll'); lp = a.newlabel('kb_poll')
    a('s_cmp_lg_u32 s20, 0'); a(f's_cbranch_scc1 {lab}')
    a('s_lshl_b32 s49, s16, 8'); a(f's_add_u32 s49, s49, {WS_CNT}')
    a('v_mov_b32 v62, 0')
    a.label(lp)
    a('buffer_load_dword v61, v62, s[8:11], s49 offen sc1')
    a('s_waitcnt vmcnt(0)')
    a('v_readfirstlane_b32 s52, v61')
    a('s_cmp_ge_u32 s52, 16')
    a(f's_cbranch_scc1 {lab}')
    a('s_sleep 1')
    a(f's_branch {lp}')
    a.label(lab)
    a('s_barrier')
    stamp(a, 3)
    a('v_lshl_add_u32 v60, v2, 5, v6'); a('v_lshlrev_b32 v60, 7, v60'); a('v_lshl_add_u32 v60, v7, 5, v60')
    a(f's_lshl_b32 s48, s16, 14'); a(f's_add_u32 s48, s48, {WS_Z2ST}')
    S.vm = []
    for jj in range(2):
        a(f'buffer_load_dwordx4 v[{20+8*jj}:{23+8*jj}], v60, s[8:11], s48 offen offset:{jj*2048} sc1')
        a(f'buffer_load_dwordx4 v[{24+8*jj}:{27+8*jj}], v60, s[8:11], s48 offen offset:{jj*2048+16} sc1')
    a('s_waitcnt vmcnt(0)')
    for jj in range(2):
        b = 20 + 8*jj
        a(f'v_pk_add_f32 v[{b}:{b+1}], v[{b}:{b+1}], v[{b+2}:{b+3}]'); a(f'v_pk_add_f32 v[{b+4}:{b+5}], v[{b+4}:{b+5}], v[{b+6}:{b+7}]')
        a(f'v_pk_add_f32 v[{b}:{b+1}], v[{b}:{b+1}], v[{b+4}:{b+5}]')
    for r in (20, 21, 28, 29):
        for sw in ('v_permlane32_swap_b32', 'v_permlane16_swap_b32'):
            a(f'v_mov_b32 v{T}, v{r}'); a(f'{sw} v{r}, v{T}'); a(f'v_add_f32 v{r}, v{r}, v{T}')
    for jj in range(2):
        b = 20 + 8*jj
        a(f'v_mul_f32 v{b}, {H(1/2304)}, v{b}'); a(f'v_mul_f32 v{b+1}, {H(1/2304)}, v{b+1}')
        a(f'v_fma_f32 v{b+1}, -v{b}, v{b}, v{b+1}'); a(f'v_max_f32 v{b+1}, 0, v{b+1}'); a(f'v_add_f32 v{b+1}, {H(1e-5)}, v{b+1}')
        a(f'v_rsq_f32 v{RM+2*jj}, v{b+1}'); a(f'v_mul_f32 v{RM+2*jj+1}, v{b}, v{RM+2*jj}')
    RS = 304
    a(f'v_mul_u32_u24 v60, {RS}, v6'); a('v_lshl_add_u32 v60, v7, 3, v60'); a(f'v_mul_u32_u24 v61, {32*RS}, v2'); a('v_add_u32 v60, v60, v61')
    a('v_lshrrev_b32 v62, 2, v6'); a('v_lshl_add_u32 v62, v7, 2, v62'); a(f'v_mul_u32_u24 v62, {RS}, v62'); a('v_and_b32 v63, 3, v1'); a('v_lshl_add_u32 v62, v63, 3, v62'); a('v_add_u32 v62, v62, v61')
    for ii in range(9):
        for jj in range(2):
            src = ACC2 + (ii*2 + jj)*4; rm = RM + 2*jj
            for p in range(2):
                a(f'v_pk_fma_f32 v[{src+2*p}:{src+2*p+1}], v[{src+2*p}:{src+2*p+1}], v[{rm}:{rm+1}], v[{rm}:{rm+1}] op_sel:[0,0,1] op_sel_hi:[1,0,1] neg_lo:[0,0,1] neg_hi:[0,0,1]')
            a(f'v_cvt_pk_bf16_f32 v{src}, v{src}, v{src+1}'); a(f'v_cvt_pk_bf16_f32 v{src+1}, v{src+2}, v{src+3}')
            S.ds(f'ds_write_b64 v60, v[{src}:{src+1}] offset:{jj*16*RS + ii*32}', 'tw')
    S.wait_lg_all()
    for ii in range(9):
        r = 20 + 4*ii
        S.ds(f'ds_read_b64_tr_b16 v[{r}:{r+1}], v62 offset:{ii*32}', ('tr', ii))
        S.ds(f'ds_read_b64_tr_b16 v[{r+2}:{r+3}], v62 offset:{16*RS + ii*32}', ('tr', ii))
    a('s_lshl_b32 s50, s17, 6'); a('s_lshl_b32 s51, s16, 2'); a('s_add_u32 s50, s50, s51'); a('s_add_u32 s50, s50, s20')
    a('s_mul_i32 s50, s50, 9216'); a(f's_add_u32 s50, s50, {WS_Z2T}')
    for ii in range(9):
        r = 20 + 4*ii
        S.wait_lg(('tr', ii))
        a(f's_add_u32 s51, s50, {ii*1024}')
        a(f'buffer_store_dwordx4 v[{r}:{r+3}], v3, s[8:11], s51 offen sc1')
    kexit(a, name, kidx)
    return dict(name=name, grid=256, block=256, lds=KB_LDS, vgpr=208+252, accum=208, sgpr=102)
```

```python
from common import *
from gen_kb import GC0, GC1

SLOT = 36864
KC_LDS = 4*SLOT
NST = 16

def gen_kc(a, kidx=3):
    name = 'kc_kernel'
    kstart(a, name)
    a('s_cmp_ge_u32 s2, 256'); a(f's_cbranch_scc1 {name}_exit')
    a(f's_load_dwordx2 s[8:9], s[0:1], {KA["ws"]}')
    a(f's_load_dwordx2 s[4:5], s[0:1], {KA["b_sp"]}')
    xcd_tile(a, 16, 17, 18, 19)
    a('v_and_b32 v1, 63, v0'); a('v_lshrrev_b32 v7, 6, v0')
    a('v_readfirstlane_b32 s20, v7')
    a('v_lshlrev_b32 v2, 4, v1')
    for sl in range(4): a(f'v_add_u32 v{3+sl}, {sl*SLOT}, v2')
    a('s_waitcnt lgkmcnt(0)')
    srd(a, 8, 8, WS_SIZE)
    srd(a, 4, 4, 2048*2)
    IF = 8
    JF = 44
    Z1 = 172
    BS = 208
    T = 212
    a('s_lshl_b32 s21, s2, 2'); a('s_add_u32 s21, s21, s20'); a('s_mul_i32 s21, s21, 9216'); a(f's_add_u32 s21, s21, {WS_Z1}')
    for ii in range(9):
        if ii % 4 == 0 and ii: a('s_add_u32 s21, s21, 4096')
        o = f' offset:{(ii % 4)*1024}' if ii % 4 else ''
        a(f'buffer_load_dwordx4 v[{Z1+4*ii}:{Z1+4*ii+3}], v2, s[8:11], s21 offen{o}')
    a('v_and_b32 v210, 15, v1'); a('v_lshlrev_b32 v210, 1, v210')
    a('s_lshl_b32 s22, s16, 8'); a('s_lshl_b32 s23, s20, 6'); a('s_add_u32 s22, s22, s23')
    a(f'buffer_load_ushort v{BS}, v210, s[4:7], s22 offen'); a(f'buffer_load_ushort v{BS+1}, v210, s[4:7], s22 offen offset:32')
    a(f's_mul_i32 s34, s17, {64*9216}'); a(f's_add_u32 s34, s34, {WS_Z2T}')
    a('s_mul_i32 s31, s20, 9216'); a('s_add_u32 s16, s16, 0')
    a('s_add_u32 s24, s34, s31')
    a('s_lshl_b32 s25, s16, 2'); a('s_add_u32 s25, s25, s20'); a('s_lshl_b32 s25, s25, 17'); a(f's_add_u32 s25, s25, {WS_WSP}')
    def jreg(st, u, jj): return JF + ((st*4 + u)*2 + jj)*4
    def dma_ops(slot):
        ops = []
        for p in range(9):
            pre = []
            if p % 4 == 0:
                pre = [f's_add_u32 m0, s31, {slot*SLOT+p*1024}']
                pre += ['s_nop 0'] if p == 0 else [f's_add_u32 s26, s24, {p*1024}']
            so = 's24' if p < 4 else 's26'
            post = [f's_add_u32 s24, s24, {4*9216}'] if p == 8 else []
            o = f' offset:{(p%4)*1024}' if p % 4 else ''
            ops.append(pre + [f'buffer_load_dwordx4 v2, s[8:11], {so} offen{o} lds'] + post)
        return ops
    def j_ops(slot):
        ops = []
        for x in range(8):
            pre = ['s_add_u32 s27, s25, 4096'] if x == 4 else []
            so = 's25' if x < 4 else 's27'
            post = ['s_add_u32 s25, s25, 8192'] if x == 7 else []
            r = jreg(slot, x//2, x % 2)
            o = f' offset:{(x%4)*1024}' if x % 4 else ''
            ops.append(pre + [f'buffer_load_dwordx4 v[{r}:{r+3}], v2, s[8:11], {so} offen{o}'] + post)
        return ops
    def load_ops(slot):
        d = dma_ops(slot); j = j_ops(slot); out = []
        while d or j:
            if d: out.append(d.pop(0))
            if j: out.append(j.pop(0))
        return out
    NL = 17
    for st in range(3):
        for op in load_ops(st):
            for l in op: a(l)
    for i in range(72): a(f'v_accvgpr_write_b32 a{i}, 0')
    a(f'v_mov_b32 v{T+8}, {H(GC0)}'); a(f'v_mov_b32 v{T+9}, {H(GC1)}'); a('s_mov_b32 s46, 1.0'); a('s_mov_b32 s47, 1.0')
    a(f's_waitcnt vmcnt({3*NL})')
    stamp(a, 0)
    for k in range(36):
        r = Z1 + k; x = T + 2*(k % 2); t = T + 4 + 2*(k % 2)
        a(f'v_lshlrev_b32 v{x}, 16, v{r}'); a(f'v_and_b32 v{x+1}, 0xffff0000, v{r}')
        a(f'v_pk_mul_f32 v[{t}:{t+1}], v[{x}:{x+1}], v[{x}:{x+1}]')
        a(f'v_pk_fma_f32 v[{t}:{t+1}], v[{t}:{t+1}], v[{T+8}:{T+9}], v[{T+8}:{T+9}] op_sel:[0,1,0] op_sel_hi:[1,1,0]')
        a(f'v_pk_mul_f32 v[{t}:{t+1}], v[{t}:{t+1}], v[{x}:{x+1}]')
        a(f'v_exp_f32 v{t}, v{t}'); a(f'v_exp_f32 v{t+1}, v{t+1}')
        a(f'v_pk_add_f32 v[{t}:{t+1}], v[{t}:{t+1}], s[46:47]')
        a(f'v_rcp_f32 v{t}, v{t}'); a(f'v_rcp_f32 v{t+1}, v{t+1}')
        a(f'v_pk_mul_f32 v[{x}:{x+1}], v[{x}:{x+1}], v[{t}:{t+1}]')
        a(f'v_cvt_pk_bf16_f32 v{r}, v{x}, v{x+1}')
    a(f'v_lshlrev_b32 v{BS}, 16, v{BS}'); a(f'v_lshlrev_b32 v{BS+1}, 16, v{BS+1}')
    stamp(a, 1)
    a(f's_waitcnt vmcnt({2*NL})')
    a('s_barrier')
    for ii in range(9):
        a(f'ds_read_b128 v[{IF+ii*4}:{IF+ii*4+3}], v3 offset:{ii*1024}')
    def stage(st, n_abs=None, spread=2):
        for u in range(4):
            last = (u == 3)
            if last and (n_abs is None or n_abs+1 < NST):
                more = (n_abs is None) or (n_abs+2 < NST)
                a(f's_waitcnt vmcnt({NL if more else 0})')
                a('s_barrier')
            for ii in range(9):
                nxt = not (last and n_abs is not None and n_abs+1 >= NST)
                a(f's_waitcnt lgkmcnt({8 if nxt else 8-ii})')
                for jj in range(2):
                    ac = (ii*2+jj)*4; r = jreg(st, u, jj)
                    a(f'v_mfma_f32_16x16x32_bf16 a[{ac}:{ac+3}], v[{IF+ii*4}:{IF+ii*4+3}], v[{r}:{r+3}], a[{ac}:{ac+3}]')
                if nxt:
                    if not last: a(f'ds_read_b128 v[{IF+ii*4}:{IF+ii*4+3}], v{3+st} offset:{(u+1)*9216+ii*1024}')
                    else: a(f'ds_read_b128 v[{IF+ii*4}:{IF+ii*4+3}], v{3+(st+1)%4} offset:{ii*1024}')
                pos = ((u+1) % 4)*9 + ii
                slot = (st+3) % 4 if last else (st+2) % 4
                tgt = None if n_abs is None else (n_abs+3 if last else n_abs+2)
                if tgt is not None and tgt >= NST: continue
                if n_abs == 0 and not last: continue
                ops = load_ops(slot)
                if pos % spread == 0 and pos//spread < len(ops):
                    for l in ops[pos//spread]: a(l)
    for st in range(4): stage(st, st)
    a('s_mov_b32 s33, 2')
    a.label(f'{name}_loop')
    for st in range(4): stage(st)
    a('s_sub_u32 s33, s33, 1'); a('s_cmp_lg_u32 s33, 0'); a(f's_cbranch_scc1 {name}_loop')
    for st in range(4): stage(st, NST-4+st)
    stamp(a, 2)
    a('s_nop 7')
    a('s_lshl_b32 s40, s16, 1'); a('s_lshr_b32 s41, s20, 1'); a('s_add_u32 s40, s40, s41'); a(f's_mul_i32 s40, s40, {72*4096}')
    a('s_and_b32 s41, s20, 1'); a('s_lshl_b32 s41, s41, 11'); a('s_add_u32 s40, s40, s41'); a(f's_add_u32 s40, s40, {WS_ZG}')
    a('s_mul_i32 s41, s17, 9')
    a('s_lshr_b32 s42, s41, 1'); a('s_lshl_b32 s42, s42, 12'); a('s_add_u32 s40, s40, s42')
    def val(ii, jj, dst):
        ac = (ii*2+jj)*4; z = Z1 + 4*ii + 2*jj
        x = T; g = T + 4
        for k in range(4): a(f'v_accvgpr_read_b32 v{g+k}, a{ac+k}')
        a(f'v_lshlrev_b32 v{x}, 16, v{z}'); a(f'v_and_b32 v{x+1}, 0xffff0000, v{z}'); a(f'v_lshlrev_b32 v{x+2}, 16, v{z+1}'); a(f'v_and_b32 v{x+3}, 0xffff0000, v{z+1}')
        for p in range(2):
            a(f'v_pk_add_f32 v[{g+2*p}:{g+2*p+1}], v[{g+2*p}:{g+2*p+1}], v[{BS}:{BS+1}] op_sel:[0,{jj}] op_sel_hi:[1,{jj}]')
        for p in range(2):
            a(f'v_pk_mul_f32 v[{g+2*p}:{g+2*p+1}], v[{g+2*p}:{g+2*p+1}], v[{x+2*p}:{x+2*p+1}]')
        a(f'v_cvt_pk_bf16_f32 v{dst}, v{g}, v{g+1}'); a(f'v_cvt_pk_bf16_f32 v{dst+1}, v{g+2}, v{g+3}')
    odd = a.newlabel('kc_odd'); done = a.newlabel('kc_done')
    a('s_bitcmp1_b32 s17, 0'); a(f's_cbranch_scc1 {odd}')
    for par in range(2):
        if par == 1: a.label(odd)
        ii = 0; cnt = 0
        while ii < 9:
            G = par + ii
            srel = G >> 1
            for jj in range(2):
                d = 8 + 8*(cnt % 4) + 4*jj
                if G % 2 == 0 and ii + 1 < 9:
                    val(ii, jj, d); val(ii+1, jj, d+2)
                    a(f's_add_u32 s43, s40, {srel*4096 + jj*1024}')
                    a(f'buffer_store_dwordx4 v[{d}:{d+3}], v2, s[8:11], s43 offen sc1')
                else:
                    val(ii, jj, d)
                    a(f's_add_u32 s43, s40, {srel*4096 + jj*1024 + (G % 2)*8}')
                    a(f'buffer_store_dwordx2 v[{d}:{d+1}], v2, s[8:11], s43 offen sc1')
            ii += 2 if (G % 2 == 0 and ii + 1 < 9) else 1
            cnt += 1
        if par == 0: a(f's_branch {name}_exit')
    kexit(a, name, kidx)
    return dict(name=name, grid=256, block=256, lds=KC_LDS, vgpr=228+72, accum=228, sgpr=102)
```

```python
from common import *

PD = 5
KD_LDS = 80*1024 + 20*1024
def gen_kd(a, kidx=4):
    name = 'kd_kernel'
    kstart(a, name)
    a('s_cmp_ge_u32 s2, 256'); a(f's_cbranch_scc1 {name}_exit')
    a(f's_load_dwordx2 s[8:9], s[0:1], {KA["ws"]}')
    a(f's_load_dwordx2 s[4:5], s[0:1], {KA["out"]}')
    a('s_and_b32 s18, s2, 7'); a('s_lshr_b32 s19, s2, 3')
    a('s_and_b32 s16, s18, 3'); a('s_lshl_b32 s16, s16, 3'); a('s_and_b32 s17, s19, 7'); a('s_add_u32 s16, s16, s17')
    a('s_lshr_b32 s17, s18, 2'); a('s_lshl_b32 s17, s17, 2'); a('s_lshr_b32 s19, s19, 3'); a('s_add_u32 s17, s17, s19')
    a('v_and_b32 v1, 63, v0'); a('v_lshrrev_b32 v7, 6, v0')
    a('v_readfirstlane_b32 s20, v7')
    a('v_lshlrev_b32 v2, 4, v1')
    a('v_and_b32 v5, 15, v1'); a('v_lshrrev_b32 v6, 4, v1')
    a('s_waitcnt lgkmcnt(0)')
    srd(a, 8, 8, WS_SIZE)
    srd(a, 4, 4, 2048*1152)
    big = a.newlabel('kd_n4')
    a('s_cmp_ge_u32 s17, 4'); a(f's_cbranch_scc1 {big}')
    for NFR in (5, 4):
        if NFR == 4: a.label(big)
        S = Stream(a)
        if NFR == 5:
            a('s_mul_i32 s21, s17, 80'); a(f's_mul_i32 s22, s17, {72*5120}')
        else:
            a('s_sub_u32 s23, s17, 4'); a('s_lshl_b32 s21, s23, 6'); a('s_add_u32 s21, s21, 320'); a(f's_mul_i32 s22, s23, {72*4096}'); a(f's_add_u32 s22, s22, {4*72*5120}')
        a(f's_mul_i32 s23, s20, {18*NFR*1024}'); a('s_add_u32 s22, s22, s23'); a(f's_add_u32 s22, s22, {WS_WOT}')
        a(f's_mul_i32 s24, s16, {72*4096}'); a(f's_mul_i32 s23, s20, {18*4096}'); a('s_add_u32 s24, s24, s23'); a(f's_add_u32 s24, s24, {WS_ZG}')
        FR = 8
        def wreg(k, ii): return FR + (k % PD)*36 + ii*4
        def zreg(k, jj): return FR + (k % PD)*36 + 20 + jj*4
        def loads(k):
            ops = []
            for jj in range(4):
                ops.append(([f's_add_u32 s25, s24, {k*4096}'] if jj == 0 else [], f'buffer_load_dwordx4 v[{zreg(k,jj)}:{zreg(k,jj)+3}], v2, s[8:11], s25 offen' + (f' offset:{jj*1024}' if jj else ''), ('k', k)))
            for ii in range(NFR):
                pre = [f's_add_u32 s26, s22, {k*NFR*1024}'] if ii == 0 else ([f's_add_u32 s26, s26, 4096'] if ii == 4 else [])
                ops.append((pre, f'buffer_load_dwordx4 v[{wreg(k,ii)}:{wreg(k,ii)+3}], v2, s[8:11], s26 offen' + (f' offset:{(ii%4)*1024}' if ii % 4 else ''), ('k', k)))
            return ops
        def issue(op):
            for l in op[0]: a(l)
            S.vmem(op[1], op[2])
        for k in range(PD-1):
            for op in loads(k): issue(op)
        XO = 80*1024
        a('s_lshr_b32 s27, s16, 1'); a(f's_mul_i32 s27, s27, {576*256}'); a('s_lshl_b32 s28, s21, 8'); a('s_add_u32 s27, s27, s28')
        a(f's_mul_i32 s28, s20, {NFR*1024}'); a('s_add_u32 s27, s27, s28'); a(f's_add_u32 s27, s27, {WS_X1T}')
        a(f's_add_u32 m0, s28, {XO}')
        a('s_nop 0')
        for b in range(NFR):
            if b == 4:
                a(f's_add_u32 m0, s28, {XO+4096}'); a('s_add_u32 s27, s27, 4096')
            S.vmem(f'buffer_load_dwordx4 v2, s[8:11], s27 offen' + (f' offset:{(b%4)*1024}' if b % 4 else '') + ' lds', 'X')
        GB = 188
        a('v_lshlrev_b32 v3, 4, v6'); a('s_lshl_b32 s29, s21, 2'); a(f's_add_u32 s29, s29, {WS_MOD + 5*576*4}')
        for ii in range(NFR):
            S.vmem(f'buffer_load_dwordx4 v[{GB+4*ii}:{GB+4*ii+3}], v3, s[8:11], s29 offen' + (f' offset:{ii*64}' if ii else ''), 'G')
        for i in range(NFR*16): a(f'v_accvgpr_write_b32 a{i}, 0')
        stamp(a, 0)
        for k in range(18):
            q = loads(k + PD - 1) if k + PD - 1 < 18 else []
            S.wait_vm(('k', k))
            n = 0
            for ii in range(NFR):
                for jj in range(4):
                    ac = (ii*4 + jj)*4
                    a(f'v_mfma_f32_16x16x32_bf16 a[{ac}:{ac+3}], v[{wreg(k,ii)}:{wreg(k,ii)+3}], v[{zreg(k,jj)}:{zreg(k,jj)+3}], a[{ac}:{ac+3}]')
                    n += 1
                    if q and n % 2 == 0: issue(q.pop(0))
            while q: issue(q.pop(0))
        stamp(a, 1)
        a(f's_mul_i32 s30, s20, {4*NFR*1024}'); a('v_add_u32 v4, s30, v2')
        R0 = 8
        for jj in range(4):
            for ii in range(NFR):
                ac = (ii*4 + jj)*4; r = R0 + (jj*NFR + ii)*4
                for k in range(4): a(f'v_accvgpr_read_b32 v{r+k}, a{ac+k}')
                S.ds(f'ds_write_b128 v4, v[{r}:{r+3}] offset:{(jj*NFR+ii)*1024}', 'rw')
        S.wait_lg_all(); S.wait_vm_all()
        a('s_barrier')
        a(f's_mul_i32 s30, s20, {NFR*1024}'); a('v_add_u32 v4, s30, v2')
        a(f'v_add_u32 v3, {2*4*NFR*1024}, v4')
        for src in range(4):
            for ii in range(NFR):
                r = R0 + (src*NFR + ii)*4
                S.ds(f'ds_read_b128 v[{r}:{r+3}], v{4 if src < 2 else 3} offset:{((src % 2)*4*NFR + ii)*1024}', ('rr', ii))
        a('v_lshrrev_b32 v100, 2, v5'); a('v_and_b32 v101, 3, v1')
        a('v_lshrrev_b32 v102, 1, v6'); a('v_lshl_add_u32 v102, v102, 2, v100'); a('v_lshlrev_b32 v102, 1, v102')
        a('s_and_b32 s31, s16, 1'); a('s_lshl_b32 s31, s31, 3'); a('s_lshl_b32 s32, s20, 1'); a('s_add_u32 s31, s31, s32')
        a('v_lshrrev_b32 v103, 1, v101'); a('v_add_u32 v103, s31, v103'); a('v_xor_b32 v103, v103, v102')
        a('v_lshl_add_u32 v104, v6, 2, v100'); a('v_lshlrev_b32 v104, 8, v104'); a('v_lshl_add_u32 v104, v103, 4, v104')
        a('v_and_b32 v103, 1, v101'); a('v_lshl_add_u32 v104, v103, 3, v104'); a(f'v_add_u32 v104, {XO}, v104')
        XV = 106
        for ii in range(NFR):
            S.ds(f'ds_read_b64_tr_b16 v[{XV+2*ii}:{XV+2*ii+1}], v104 offset:{ii*4096}', ('xr', ii))
        a('s_lshl_b32 s31, s16, 6'); a('s_lshl_b32 s32, s20, 4'); a('s_add_u32 s31, s31, s32'); a('s_mul_i32 s31, s31, 1152'); a('s_lshl_b32 s32, s21, 1'); a('s_add_u32 s31, s31, s32')
        a('v_mul_u32_u24 v105, 1152, v5'); a('v_lshl_add_u32 v105, v6, 3, v105')
        for ii in range(NFR):
            S.wait_lg(('rr', ii), ('xr', ii)) if ii == 0 else None
            if ii == 0: S.wait_lg_all()
            r0 = R0 + ii*4
            for p in range(2):
                a(f'v_pk_add_f32 v[{r0+2*p}:{r0+2*p+1}], v[{r0+2*p}:{r0+2*p+1}], v[{r0+4*NFR+2*p}:{r0+4*NFR+2*p+1}]')
                a(f'v_pk_add_f32 v[{r0+8*NFR+2*p}:{r0+8*NFR+2*p+1}], v[{r0+8*NFR+2*p}:{r0+8*NFR+2*p+1}], v[{r0+12*NFR+2*p}:{r0+12*NFR+2*p+1}]')
            for p in range(2):
                a(f'v_pk_add_f32 v[{r0+2*p}:{r0+2*p+1}], v[{r0+2*p}:{r0+2*p+1}], v[{r0+8*NFR+2*p}:{r0+8*NFR+2*p+1}]')
            x = 120
            a(f'v_lshlrev_b32 v{x}, 16, v{XV+2*ii}'); a(f'v_and_b32 v{x+1}, 0xffff0000, v{XV+2*ii}'); a(f'v_lshlrev_b32 v{x+2}, 16, v{XV+2*ii+1}'); a(f'v_and_b32 v{x+3}, 0xffff0000, v{XV+2*ii+1}')
            for p in range(2):
                a(f'v_pk_fma_f32 v[{r0+2*p}:{r0+2*p+1}], v[{r0+2*p}:{r0+2*p+1}], v[{GB+4*ii+2*p}:{GB+4*ii+2*p+1}], v[{x+2*p}:{x+2*p+1}]')
            o = 124 + 2*(ii % 2)
            a(f'v_cvt_pk_bf16_f32 v{o}, v{r0}, v{r0+1}'); a(f'v_cvt_pk_bf16_f32 v{o+1}, v{r0+2}, v{r0+3}')
            a(f'buffer_store_dwordx2 v[{o}:{o+1}], v105, s[4:7], s31 offen' + (f' offset:{ii*32}' if ii else ''))
        if NFR == 5: a(f's_branch {name}_exit')
    kexit(a, name, kidx)
    return dict(name=name, grid=256, block=256, lds=KD_LDS, vgpr=208+80, accum=208, sgpr=102)
```

```python
KA = dict(x=0, A_re=8, A_im=16, B_re=24, B_im=32, C_re=40, C_im=48, log_dt=56, Dskip=64, B_x=72, w_in=80, w_sp=88,
          b_sp=96, w_out=104, c=112, w_mod=120, out=128, dbg=136, ws=144)
WS_MOD  = 0x000000
WS_RHO  = 0x004000
WS_MU   = 0x006000
WS_CS   = 0x008000
WS_BIAS = 0x00D000
WS_CNT  = 0x014000
WS_Z2ST = 0x020000
WS_PROF = 0x080000
WS_XT   = 0x100000
WS_KK   = 0x400000
WS_X1T  = 0x700000
WS_W1T  = 0x1000000
WS_WOT  = 0x1600000
WS_WSP  = 0x1A00000
WS_Z1   = 0x2200000
WS_Z2T  = 0x2C00000
WS_ZG   = 0x3600000
WS_SIZE = 0x4000000
```

```python
import sys
from common import *
import common
import gen_k0

HEADER = '''; adaLN + S4 conv + gMLP mixer, multi-kernel pipeline (generated by a hand-written generator script)
'''
def build(kernels=('k0',), prof=False):
    common.PROF[0] = prof
    a = Asm()
    infos = []
    for idx, k in enumerate(kernels):
        if k == 'k0': infos.append(gen_k0.gen_k0(a, idx))
        elif k == 'k1':
            import gen_k1; infos.append(gen_k1.gen_k1(a, idx))
        elif k == 'kb':
            import gen_kb; infos.append(gen_kb.gen_kb(a, idx))
        elif k == 'kc':
            import gen_kc; infos.append(gen_kc.gen_kc(a, idx))
        elif k == 'ka':
            import gen_ka; infos.append(gen_ka.gen_ka(a, idx))
        elif k == 'kg':
            import gen_kg; infos.append(gen_kg.gen_kg(a, idx))
        elif k == 'kd':
            import gen_kd; infos.append(gen_kd.gen_kd(a, idx))
    hdr = HEADER
    for i in infos:
        hdr += f'; @launch kernel={i["name"]} grid=({i["grid"]},1,1) block=({i["block"]},1,1) lds={i["lds"]}\n'
    hdr += '.amdgcn_target "amdgcn-amd-amdhsa--gfx950"\n.text\n'
    desc = '.section .rodata,"a"\n.p2align 6\n'
    for i in infos:
        desc += kernel_desc(i['name'], i['vgpr'], i['sgpr'], i['accum'])
        desc += '.p2align 6\n'
    return hdr + a.text() + desc

if __name__ == '__main__':
    out = sys.argv[1]
    ks = sys.argv[2].split(',') if len(sys.argv) > 2 else ['k0']
    prof = len(sys.argv) > 3 and sys.argv[3] == 'prof'
    open(out, 'w').write(build(ks, prof))
```

```python
from asmgen import *
from layout import *
import struct
def f32bits(x):
    return struct.unpack('<I', struct.pack('<f', x))[0]
def H(x): return hex(f32bits(x))
LOG2E = 1.4426950408889634
PROF = [False]
STAMPREG = [82, 84, 86, 88, 70, 72, 74, 76]

def srd(a, d, p, nbytes):
    if d != p: a(f's_mov_b32 s{d}, s{p}')
    a(f's_and_b32 s{d+1}, s{p+1}, 0xffff')
    a(f's_mov_b32 s{d+2}, {nbytes}')
    a(f's_mov_b32 s{d+3}, 0x20000')

CODEPF = dict(on=True, nwg=64, nxt={})
def kstart(a, name, pfreg, nloads=1):
    kernel_begin(a, name)
    if PROF[0]:
        a('s_memrealtime s[96:97]')
        for i in range(8): a(f's_mov_b32 s{STAMPREG[i]}, 0')
    if CODEPF['on']:
        lab = a.newlabel(name + '_pf')
        a(f's_cmp_ge_u32 s2, {CODEPF["nwg"]}'); a(f's_cbranch_scc1 {lab}')
        a('s_getpc_b64 s[4:5]')
        a.label(f'{name}_pc')
        a(f's_mov_b32 s6, {name}_codeend-{name}_pc-4')
        a('v_lshlrev_b32 v1, 7, v0')
        for k in range(nloads):
            if k: a(f'v_add_u32 v1, 0x8000, v1')
            a('v_min_u32 v2, s6, v1')
            a(f'global_load_dword v{pfreg + (k if nloads < 3 else 0)}, v2, s[4:5]')
        a.label(lab)

def stamp(a, i):
    if PROF[0]:
        a(f's_memrealtime s[{STAMPREG[i]}:{STAMPREG[i]+1}]')

def kexit(a, name, kidx):
    a.label(f'{name}_exit')
    if PROF[0]:
        a('s_memrealtime s[98:99]')
        a(f's_load_dwordx2 s[92:93], s[0:1], {KA["ws"]}')
        a('s_getreg_b32 s100, hwreg(HW_REG_XCC_ID)')
        a('s_waitcnt lgkmcnt(0)')
        a('s_and_b32 s93, s93, 0xffff'); a(f's_mov_b32 s94, {WS_SIZE}'); a('s_mov_b32 s95, 0x20000')
        a('s_mov_b64 exec, -1')
        a('v_mov_b32 v4, s96'); a('v_mov_b32 v5, s98'); a('v_mov_b32 v6, s100'); a('v_mov_b32 v7, 0')
        a('v_mov_b32 v8, s82'); a('v_mov_b32 v9, s84'); a('v_mov_b32 v10, s86'); a('v_mov_b32 v11, s88')
        a('s_lshl_b32 s101, s2, 6'); a(f's_add_u32 s101, s101, {WS_PROF + kidx*0x20000}')
        a('v_mov_b32 v1, 0')
        a('v_cmp_eq_u32 vcc, 0, v0')
        a('s_and_saveexec_b64 s[96:97], vcc')
        a(f's_cbranch_execz {name}_end')
        a('buffer_store_dwordx4 v[4:7], v1, s[92:95], s101 offen')
        a('buffer_store_dwordx4 v[8:11], v1, s[92:95], s101 offen offset:16')
        a('v_mov_b32 v8, s70'); a('v_mov_b32 v9, s72'); a('v_mov_b32 v10, s74'); a('v_mov_b32 v11, s76')
        a('s_nop 1')
        a('buffer_store_dwordx4 v[8:11], v1, s[92:95], s101 offen offset:32')
        a.label(f'{name}_end')
    a('s_endpgm')
    a.label(f'{name}_codeend')

def dispatch(a, name, jobs):
    base = 0
    for lab, cnt in jobs:
        a(f's_sub_u32 s3, s2, {base}')
        a(f's_cmp_lt_u32 s2, {base+cnt}')
        a(f's_cbranch_scc1 {lab}')
        base += cnt
    a(f's_branch {name}_exit')
    return base

class Stream:
    def __init__(self, a):
        self.a = a; self.lg = []; self.vm = []
    def ds(self, text, tag=None):
        self.a(text); self.lg.append(tag)
    def vmem(self, text, tag=None):
        self.a(text); self.vm.append(tag)
    def _wait(self, lst, tags, cap, name):
        idx = -1
        for i, t in enumerate(lst):
            if t in tags: idx = i
        if idx < 0: return lst
        n = len(lst) - 1 - idx
        n = min(n, cap)
        self.a(f's_waitcnt {name}({n})')
        return lst[len(lst)-n:] if n else []
    def wait_lg(self, *tags): self.lg = self._wait(self.lg, set(tags), 15, 'lgkmcnt')
    def wait_vm(self, *tags): self.vm = self._wait(self.vm, set(tags), 63, 'vmcnt')
    def wait_lg_all(self):
        if self.lg: self.a('s_waitcnt lgkmcnt(0)'); self.lg = []
    def wait_vm_all(self):
        if self.vm: self.a('s_waitcnt vmcnt(0)'); self.vm = []

def xcd_tile(a, si, sj, t1, t2):
    a(f's_and_b32 s{t1}, s2, 7'); a(f's_lshr_b32 s{t2}, s2, 3')
    a(f's_and_b32 s{si}, s{t1}, 3'); a(f's_lshl_b32 s{si}, s{si}, 2'); a(f's_and_b32 s{sj}, s{t2}, 3'); a(f's_add_u32 s{si}, s{si}, s{sj}')
    a(f's_lshr_b32 s{sj}, s{t1}, 2'); a(f's_lshl_b32 s{sj}, s{sj}, 3'); a(f's_lshr_b32 s{t2}, s{t2}, 2'); a(f's_add_u32 s{sj}, s{sj}, s{t2}')
```

```python
from common import *

RSL = 1168

def tile_load(a, srd_s, soff, rowstride, V=8):
    a('v_lshrrev_b32 v1, 3, v0')
    a('v_and_b32 v2, 7, v0')
    a(f'v_mul_u32_u24 v3, {rowstride}, v1')
    a('v_lshl_add_u32 v3, v2, 4, v3')
    for i in range(9):
        o = f' offset:{i*128}' if i else ''
        a(f'buffer_load_dwordx4 v[{V+4*i}:{V+4*i+3}], v3, s[{srd_s}:{srd_s+3}], {soff} offen{o}')

def tile_to_lds(a, V=8):
    a(f'v_mul_u32_u24 v3, {RSL}, v1')
    a('v_lshl_add_u32 v3, v2, 4, v3')
    for i in range(9):
        a(f'ds_write_b128 v3, v[{V+4*i}:{V+4*i+3}] offset:{i*128}')

def tr_addr(a, rowmul, second, dst=8, wave_bytes=32, m_bytes=128):
    a('v_and_b32 v4, 63, v0')
    a('v_lshrrev_b32 v5, 6, v0')
    a('v_lshrrev_b32 v6, 4, v4')
    a('v_bfe_u32 v7, v4, 2, 2')
    a(f'v_lshl_add_u32 v7, v6, {rowmul}, v7')
    a(f'v_mul_u32_u24 v7, {RSL}, v7')
    a('v_and_b32 v50, 3, v4')
    a('v_lshl_add_u32 v7, v50, 3, v7')
    if wave_bytes == 32: a('v_lshl_add_u32 v7, v5, 5, v7')
    else:
        a(f'v_mul_u32_u24 v50, {wave_bytes}, v5'); a('v_add_u32 v7, v7, v50')
    for m in range(9):
        a(f'ds_read_b64_tr_b16 v[{dst+4*m}:{dst+1+4*m}], v7 offset:{m*m_bytes}')
        a(f'ds_read_b64_tr_b16 v[{dst+2+4*m}:{dst+3+4*m}], v7 offset:{m*m_bytes+second*RSL}')

def job_T(a, ex):
    a.c('---- job T: transpose x + LN1 stats')
    a(f's_load_dwordx2 s[4:5], s[0:1], {KA["x"]}')
    a(f's_load_dwordx2 s[8:9], s[0:1], {KA["ws"]}')
    a('s_waitcnt lgkmcnt(0)')
    srd(a, 4, 4, 2048*1152)
    srd(a, 8, 8, WS_SIZE)
    a(f's_mul_i32 s12, s3, {32*1152}')
    tile_load(a, 4, 's12', 1152)
    a('s_lshl_b32 s13, s3, 8'); a(f's_add_u32 s13, s13, {WS_CNT}')
    a('v_mov_b32 v45, 0')
    a('buffer_store_dword v45, v45, s[8:11], s13 offen sc1')
    a('v_mov_b32 v44, 0x3f803f80')
    a('v_mov_b32 v45, 0'); a('v_mov_b32 v46, 0')
    stamp(a, 0)
    a('s_waitcnt vmcnt(0)')
    stamp(a, 1)
    tile_to_lds(a)
    a('s_waitcnt lgkmcnt(0)')
    a('s_barrier')
    tr_addr(a, 3, 4, dst=52)
    for i in range(36):
        a(f'v_dot2c_f32_bf16 v45, v{8+i}, v44')
        a(f'v_dot2c_f32_bf16 v46, v{8+i}, v{8+i}')
    stamp(a, 2)
    a('v_and_b32 v50, 15, v4')
    a('v_lshl_add_u32 v50, v5, 4, v50')
    a('v_lshlrev_b32 v50, 6, v50')
    a('v_lshl_add_u32 v50, v6, 4, v50')
    a(f's_mul_i32 s13, s3, {576*64}')
    a(f's_add_u32 s13, s13, {WS_XT}')
    for m in range(9):
        a(f's_waitcnt lgkmcnt({min(15, 2*(8-m))})')
        a(f'buffer_store_dwordx4 v[{52+4*m}:{55+4*m}], v50, s[8:11], s13 offen sc1')
        if m < 8: a(f's_add_u32 s13, s13, {64*64}')
    for m in ('quad_perm:[1,0,3,2]', 'quad_perm:[2,3,0,1]', 'row_half_mirror'):
        a(f'v_add_f32_dpp v45, v45, v45 {m} row_mask:0xf bank_mask:0xf')
        a(f'v_add_f32_dpp v46, v46, v46 {m} row_mask:0xf bank_mask:0xf')
    a(f'v_mul_f32 v45, {H(1.0/576)}, v45')
    a(f'v_mul_f32 v46, {H(1.0/576)}, v46')
    a('v_fma_f32 v46, -v45, v45, v46')
    a('v_max_f32 v46, 0, v46')
    a(f'v_add_f32 v46, {H(1e-5)}, v46')
    a('v_rsq_f32 v48, v46')
    a('v_mul_f32 v49, v45, v48')
    a('s_lshl_b32 s13, s3, 7')
    a(f's_add_u32 s14, s13, {WS_MU}')
    a(f's_add_u32 s13, s13, {WS_RHO}')
    a('v_lshlrev_b32 v3, 2, v1')
    a('v_cmp_eq_u32 vcc, 0, v2')
    a('s_and_saveexec_b64 s[16:17], vcc')
    a('buffer_store_dword v48, v3, s[8:11], s13 offen sc1')
    a('buffer_store_dword v49, v3, s[8:11], s14 offen sc1')
    a(f's_branch {ex}')

def job_P2(a, ex):
    a.c('---- job P2: w_out re-layout')
    a(f's_load_dwordx2 s[4:5], s[0:1], {KA["w_out"]}')
    a(f's_load_dwordx2 s[8:9], s[0:1], {KA["ws"]}')
    a('s_waitcnt lgkmcnt(0)')
    srd(a, 4, 4, 2304*1152)
    srd(a, 8, 8, WS_SIZE)
    a(f's_mul_i32 s12, s3, {32*1152}')
    tile_load(a, 4, 's12', 1152)
    a('s_waitcnt vmcnt(0)')
    tile_to_lds(a)
    a('s_waitcnt lgkmcnt(0)')
    a('s_barrier')
    tr_addr(a, 2, 16, wave_bytes=288, m_bytes=32)
    a('v_lshlrev_b32 v50, 4, v4')
    a('v_readfirstlane_b32 s14, v5')
    a('s_mul_i32 s16, s3, 36864'); a('s_mul_i32 s17, s14, 9216'); a('s_add_u32 s16, s16, s17'); a(f's_add_u32 s16, s16, {WS_WOT}')
    a('s_add_u32 s17, s16, 4096'); a('s_add_u32 s18, s16, 8192')
    for m in range(9):
        a(f's_waitcnt lgkmcnt({min(15, 2*(8-m))})')
        a(f'buffer_store_dwordx4 v[{8+4*m}:{11+4*m}], v50, s[8:11], s{16 + m//4} offen' + (f' offset:{(m % 4)*1024}' if m % 4 else '') + ' sc1')
    a(f's_branch {ex}')

def job_P3(a, ex):
    a.c('---- job P3: w_sp re-layout')
    a(f's_load_dwordx2 s[4:5], s[0:1], {KA["w_sp"]}')
    a(f's_load_dwordx2 s[8:9], s[0:1], {KA["ws"]}')
    a('v_and_b32 v4, 63, v0'); a('v_lshrrev_b32 v5, 6, v0')
    a('v_readfirstlane_b32 s14, v5')
    a('v_lshrrev_b32 v6, 2, v4'); a('v_lshlrev_b32 v6, 12, v6'); a('v_and_b32 v7, 3, v4'); a('v_lshl_add_u32 v6, v7, 4, v6')
    a('s_lshl_b32 s15, s3, 2'); a('s_add_u32 s15, s15, s14')
    a('s_lshr_b32 s16, s15, 3')
    a('s_and_b32 s17, s15, 7')
    a('s_lshl_b32 s18, s16, 16'); a('s_lshl_b32 s19, s17, 9'); a('s_add_u32 s18, s18, s19')
    a('s_lshl_b32 s21, s14, 13')
    a('s_waitcnt lgkmcnt(0)')
    srd(a, 4, 4, 2048*4096)
    srd(a, 8, 8, WS_SIZE)
    for i in range(8):
        a(f's_add_u32 m0, s21, {i*1024}'); a(f's_add_u32 s22, s18, {i*64}')
        a('buffer_load_dwordx4 v6, s[4:7], s22 offen lds')
    a('s_lshr_b32 s19, s16, 1'); a('s_lshl_b32 s19, s19, 17')
    a('s_and_b32 s20, s16, 1'); a('s_lshl_b32 s20, s20, 10'); a('s_add_u32 s19, s19, s20')
    a('s_lshl_b32 s20, s17, 14'); a('s_add_u32 s19, s19, s20'); a(f's_add_u32 s19, s19, {WS_WSP}')
    a('v_and_b32 v7, 15, v4'); a('v_lshlrev_b32 v7, 6, v7'); a('v_lshrrev_b32 v8, 4, v4'); a('v_lshl_add_u32 v7, v8, 4, v7'); a('v_add_u32 v7, s21, v7')
    a('v_lshlrev_b32 v6, 4, v4')
    a('s_waitcnt vmcnt(0)')
    for i in range(8):
        a(f'ds_read_b128 v[{8+4*i}:{11+4*i}], v7 offset:{i*1024}')
    for i in range(8):
        a(f's_waitcnt lgkmcnt({7-i})')
        a(f'buffer_store_dwordx4 v[{8+4*i}:{11+4*i}], v6, s[8:11], s19 offen sc1')
        if i < 7: a('s_add_u32 s19, s19, 2048')
    a(f's_branch {ex}')

def job_mod(a, ex):
    a.c('---- job mod')
    a(f's_load_dwordx4 s[4:7], s[0:1], {KA["c"]}')
    a(f's_load_dwordx2 s[16:17], s[0:1], {KA["ws"]}')
    a('v_and_b32 v1, 3, v0')
    a('v_lshrrev_b32 v2, 2, v0')
    a('v_mul_u32_u24 v3, 6912, v2')
    a('v_lshl_add_u32 v3, v1, 4, v3')
    a('s_lshl_b32 s13, s3, 6')
    a('v_lshlrev_b32 v4, 1, v2')
    a('s_waitcnt lgkmcnt(0)')
    srd(a, 8, 6, 576*3456*2)
    srd(a, 4, 4, 576*2)
    srd(a, 16, 16, WS_SIZE)
    for i in range(9):
        a(f'buffer_load_ushort v{48+i}, v4, s[4:7], 0 offen offset:{i*128}')
    for i in range(9):
        a(f'buffer_load_dwordx4 v[{8+4*i}:{11+4*i}], v3, s[8:11], s13 offen')
        if i < 8: a(f's_add_u32 s13, s13, {64*6912}')
    for i in range(8): a(f'v_mov_b32 v{70+i}, 0')
    stamp(a, 0)
    a('s_waitcnt vmcnt(9)')
    stamp(a, 1)
    for i in range(9):
        r = 48+i
        a(f'v_lshlrev_b32 v{r}, 16, v{r}')
        a(f'v_mul_f32 v68, {H(-LOG2E)}, v{r}')
        a('v_exp_f32 v68, v68')
        a('v_add_f32 v68, 1.0, v68')
        a('v_rcp_f32 v68, v68')
        a(f'v_mul_f32 v{r}, v{r}, v68')
        a(f'v_cvt_pk_bf16_f32 v{58+i}, 0, v{r}')
        a(f'v_lshrrev_b32 v{r}, 16, v{58+i}')
    for i in range(9):
        a(f's_waitcnt vmcnt({8-i})')
        for k in range(4):
            a(f'v_dot2c_f32_bf16 v{70+2*k}, v{8+4*i+k}, v{48+i}')
            a(f'v_dot2c_f32_bf16 v{71+2*k}, v{8+4*i+k}, v{58+i}')
    stamp(a, 2)
    for k in range(8):
        a(f'v_add_f32_dpp v{70+k}, v{70+k}, v{70+k} row_ror:4 row_mask:0xf bank_mask:0xf')
    for k in range(8):
        a(f'v_add_f32_dpp v{70+k}, v{70+k}, v{70+k} row_ror:8 row_mask:0xf bank_mask:0xf')
    a('v_lshrrev_b32 v5, 4, v0'); a('v_lshlrev_b32 v5, 7, v5'); a('v_lshl_add_u32 v5, v1, 5, v5')
    a('v_bfe_u32 v6, v0, 2, 2')
    a('v_cmp_eq_u32 vcc, 0, v6')
    a('s_and_saveexec_b64 s[14:15], vcc')
    a('ds_write_b128 v5, v[70:73]')
    a('ds_write_b128 v5, v[74:77] offset:16')
    a('s_mov_b64 exec, s[14:15]')
    a('s_waitcnt lgkmcnt(0)')
    a('s_barrier')
    a('v_cmp_gt_u32 vcc, 32, v0')
    a('s_and_saveexec_b64 s[14:15], vcc')
    a(f's_cbranch_execz {ex}')
    a('v_lshlrev_b32 v5, 2, v0')
    for i in range(16):
        a(f'ds_read_b32 v{8+i}, v5 offset:{i*128}')
    a('s_waitcnt lgkmcnt(0)')
    for st in (8, 4, 2, 1):
        for i in range(st):
            a(f'v_add_f32 v{8+i}, v{8+i}, v{8+i+st}')
    a('v_cvt_pk_bf16_f32 v6, v8, v8')
    a('v_and_b32 v6, 0xffff0000, v6')
    a('s_lshl_b32 s13, s3, 7')
    a(f's_add_u32 s13, s13, {WS_MOD}')
    a('buffer_store_dword v6, v5, s[16:19], s13 offen sc1')
    a(f's_branch {ex}')

MALLPF = [False]
KG_RS = 528
KG_CH = 57*KG_RS
KG_TAB = 3072*4
def cmul(a, d, x, y):
    a(f'v_pk_mul_f32 v[{d}:{d+1}], v[{x}:{x+1}], v[{y}:{y+1}] op_sel:[0,0] op_sel_hi:[0,1]')
    a(f'v_pk_fma_f32 v[{d}:{d+1}], v[{x}:{x+1}], v[{y}:{y+1}], v[{d}:{d+1}] op_sel:[1,1,0] op_sel_hi:[1,0,1] neg_lo:[0,1,0]')

def job_kgen(a, ex):
    a.c('---- job kgen')
    a(f's_load_dwordx8 s[4:11], s[0:1], {KA["A_re"]}')
    a(f's_load_dwordx4 s[12:15], s[0:1], {KA["C_re"]}')
    a(f's_load_dwordx2 s[16:17], s[0:1], {KA["log_dt"]}')
    a(f's_load_dwordx2 s[24:25], s[0:1], {KA["ws"]}')
    if MALLPF[0]:
        a(f's_load_dwordx4 s[28:31], s[0:1], {KA["w_in"]}')
        a(f's_load_dwordx2 s[36:37], s[0:1], {KA["w_out"]}')
    a('s_lshl_b32 s22, s3, 8')
    a('v_add_u32 v4, s22, v0'); a('v_lshlrev_b32 v4, 1, v4')
    a('v_lshrrev_b32 v2, 7, v0')
    a('s_lshl_b32 s23, s3, 1'); a('v_add_u32 v3, s23, v2'); a('v_lshlrev_b32 v3, 1, v3')
    a('s_waitcnt lgkmcnt(0)')
    a('global_load_ushort v14, v3, s[16:17]')
    for i, p in enumerate([4, 6, 8, 10, 12, 14]):
        a(f'global_load_ushort v{8+i}, v4, s[{p}:{p+1}]')
    srd(a, 24, 24, WS_SIZE)
    a('v_and_b32 v1, 127, v0'); a('v_lshlrev_b32 v5, 2, v1')
    a(f'v_mul_u32_u24 v6, {KG_CH}, v2'); a('v_add_u32 v5, v5, v6')
    stamp(a, 0)
    a('s_waitcnt vmcnt(0)')
    stamp(a, 1)
    if MALLPF[0]:
        a('s_mov_b32 s32, s30'); a('s_and_b32 s33, s31, 0xffff'); a(f's_mov_b32 s34, {2048*4096}'); a('s_mov_b32 s35, 0x20000')
        srd(a, 28, 28, 576*9216)
        srd(a, 36, 36, 2304*1152)
        a('v_lshrrev_b32 v70, 6, v0'); a('v_readfirstlane_b32 s40, v70'); a('s_lshl_b32 s41, s3, 2'); a('s_add_u32 s40, s40, s41')
        a('v_and_b32 v70, 63, v0'); a('v_lshlrev_b32 v70, 4, v70')
        for srd_s, cnt in ((32, 8), (28, 5), (36, 3)):
            a(f's_mul_i32 s41, s40, {cnt*1024}')
            for i in range(cnt):
                if i == 4: a('s_add_u32 s41, s41, 4096')
                a(f'buffer_load_dwordx4 v[112:115], v70, s[{srd_s}:{srd_s+3}], s41 offen' + (f' offset:{(i % 4)*1024}' if i % 4 else ''))
    L_HI = struct.unpack('<f', struct.pack('<f', LOG2E))[0]
    L_LO = LOG2E - L_HI
    a('v_lshlrev_b32 v14, 16, v14')
    a(f'v_mul_f32 v15, {H(L_HI)}, v14')
    a(f's_mov_b32 s22, {H(L_HI)}')
    a('v_fma_f32 v16, v14, s22, -v15')
    a(f'v_fmac_f32 v16, {H(L_LO)}, v14')
    a('v_exp_f32 v15, v15')
    a(f'v_mul_f32 v16, {H(0.6931471805599453)}, v16')
    for i in range(6): a(f'v_lshlrev_b32 v{8+i}, 16, v{8+i}')
    a('v_fma_f32 v15, v15, v16, v15')
    a('v_cvt_pk_bf16_f32 v15, v15, v15')
    a('v_and_b32 v15, 0xffff0000, v15')
    a('v_mul_f32 v8, v15, v8'); a('v_mul_f32 v9, v15, v9')
    a(f'v_mul_f32 v8, {H(LOG2E)}, v8')
    a(f'v_mul_f32 v9, {H(1/(2*3.141592653589793))}, v9')
    a('v_mul_f32 v10, v15, v10'); a('v_mul_f32 v11, v15, v11')
    a('v_mul_f32 v18, v12, v10'); a('v_fma_f32 v18, -v13, v11, v18')
    a('v_mul_f32 v19, v12, v11'); a('v_fma_f32 v19, v13, v10, v19')
    def cexp(d, mulc):
        if mulc != 1:
            a(f'v_mul_f32 v16, {H(float(mulc))}, v8'); a(f'v_mul_f32 v17, {H(float(mulc))}, v9')
            x, y = 16, 17
        else:
            x, y = 8, 9
        a(f'v_exp_f32 v26, v{x}'); a(f'v_fract_f32 v27, v{y}')
        a(f'v_cos_f32 v{d}, v27'); a(f'v_sin_f32 v{d+1}, v27')
        a(f'v_mul_f32 v{d}, v26, v{d}'); a(f'v_mul_f32 v{d+1}, v26, v{d+1}')
    cexp(20, 1); cexp(22, 8); cexp(24, 128)
    tmp = [60]
    def put(row, src, neg=False):
        t = tmp[0]; tmp[0] = 60 + (tmp[0]-60+1) % 8
        a(f'v_cvt_pk_bf16_f32 v{t}, v{src}, {"-" if neg else ""}v{src+1}')
        a(f'ds_write_b32 v5, v{t} offset:{row*KG_RS}')
    Q = {1: 20}
    for r in range(2, 8): Q[r] = 30 + 2*(r-2)
    G = [18, 28]
    put(41, G[0], neg=True)
    a('v_mov_b32 v68, 0x00003f80')
    a(f'ds_write_b32 v5, v68 offset:0')
    put(1, 20)
    P = {1: 24}
    Pregs = [42, 44]
    put(8, 24)
    for r in range(2, 8):
        cmul(a, Q[r], Q[r-1], 20)
        cmul(a, G[(r-1) % 2], G[r % 2], 22)
        put(r, Q[r]); put(41 + r-1, G[(r-1) % 2], neg=True)
    gcur = 0
    for r in range(1, 8):
        cmul(a, 46, 24, Q[r]); put(8 + r, 46)
        j = 6 + r
        cmul(a, G[1-gcur], G[gcur], 22); gcur = 1-gcur; put(41 + j, G[gcur], neg=True)
    pc = 24
    for i in range(2, 17):
        pn = Pregs[i % 2]
        cmul(a, pn, pc, 24); pc = pn
        if i in (2, 3):
            base = 16 + (i-2)*4
            put(base, pc)
            for x, r in enumerate((2, 4, 6)):
                cmul(a, 46 + 2*(x % 2), pc, Q[r]); put(base + 1 + x, 46 + 2*(x % 2))
        elif i in (4, 5, 6, 7):
            base = 24 + (i-4)*2
            put(base, pc)
            cmul(a, 46, pc, Q[4]); put(base + 1, 46)
        else:
            put(32 + (i-8), pc)
        if i in (2, 3):
            cmul(a, G[1-gcur], G[gcur], 22); gcur = 1-gcur; put(41 + 12 + i, G[gcur], neg=True)
    a('s_waitcnt lgkmcnt(0)')
    a('s_barrier')
    stamp(a, 2)
    a('v_and_b32 v1, 63, v0'); a('v_and_b32 v7, 15, v1'); a('v_lshrrev_b32 v3, 4, v1')
    a(f'v_mul_u32_u24 v4, {KG_RS}, v7'); a('v_lshl_add_u32 v4, v3, 4, v4'); a('v_add_u32 v4, v4, v6')
    a('v_lshrrev_b32 v5, 6, v0'); a('v_readfirstlane_b32 s22, v5'); a('s_and_b32 s23, s22, 1')
    for s in range(8):
        a(f'ds_read_b128 v[{8+4*s}:{11+4*s}], v4 offset:{41*KG_RS + s*64}')
    lab1 = a.newlabel('kg_t2'); lab2 = a.newlabel('kg_join')
    a('s_cmp_eq_u32 s23, 1'); a(f's_cbranch_scc1 {lab1}')
    for T in range(2):
        for s in range(8):
            a(f'ds_read_b128 v[{40+4*s+32*T}:{43+4*s+32*T}], v4 offset:{T*16*KG_RS + s*64}')
    for T in range(2):
        for i in range(4): a(f'v_mov_b32 v{104+4*T+i}, 0')
    for T in range(2):
        for s in range(8):
            a(f's_waitcnt lgkmcnt({min(15, 15 - s - 8*T)})')
            a(f'v_mfma_f32_16x16x32_bf16 v[{104+4*T}:{107+4*T}], v[{40+4*s+32*T}:{43+4*s+32*T}], v[{8+4*s}:{11+4*s}], v[{104+4*T}:{107+4*T}]')
    a('s_barrier')
    a('v_lshrrev_b32 v8, 1, v3'); a('v_lshlrev_b32 v8, 7, v8'); a('v_and_b32 v9, 1, v3'); a('v_lshl_add_u32 v8, v9, 2, v8')
    a('v_lshl_add_u32 v8, v7, 3, v8'); a('v_lshl_add_u32 v8, v8, 2, v6')
    a('ds_write_b128 v8, v[104:107]')
    a('v_lshlrev_b32 v9, 7, v3'); a('v_add_u32 v9, 256, v9')
    a('v_lshlrev_b32 v10, 8, v3')
    a('v_cmp_gt_u32 vcc, 2, v3')
    a('v_cndmask_b32 v9, v10, v9, vcc')
    a('v_lshl_add_u32 v9, v7, 3, v9'); a('v_lshl_add_u32 v9, v9, 2, v6')
    for i in range(4):
        oa = 2*i*4; ob = (128*(i >> 1) + 4*(i & 1))*4
        a(f'v_mov_b32 v10, {ob}'); a(f'v_cndmask_b32 v10, v10, {oa}, vcc' if oa <= 64 else 'BAD')
        a('v_add_u32 v10, v10, v9')
        a(f'ds_write_b32 v10, v{108+i}')
    a(f's_branch {lab2}')
    a.label(lab1)
    for s in range(8):
        a(f'ds_read_b128 v[{40+4*s}:{43+4*s}], v4 offset:{32*KG_RS + s*64}')
    for i in range(4): a(f'v_mov_b32 v{104+i}, 0')
    for s in range(8):
        a(f's_waitcnt lgkmcnt({7-s})')
        a(f'v_mfma_f32_16x16x32_bf16 v[104:107], v[{40+4*s}:{43+4*s}], v[{8+4*s}:{11+4*s}], v[104:107]')
    a('s_barrier')
    a('v_lshlrev_b32 v8, 9, v3'); a('v_lshl_add_u32 v8, v7, 3, v8'); a('v_add_u32 v8, 1024, v8'); a('v_lshl_add_u32 v8, v8, 2, v6')
    for i in range(4):
        a(f'ds_write_b32 v8, v{104+i} offset:{i*512}')
    a.label(lab2)
    a('s_waitcnt lgkmcnt(0)')
    a('s_barrier')
    stamp(a, 3)
    a('v_and_b32 v1, 127, v0')
    a('s_lshl_b32 s22, s3, 13'); a(f's_add_u32 s22, s22, {WS_KK}')
    a('v_lshlrev_b32 v4, 12, v2'); a('v_lshl_add_u32 v4, v1, 4, v4')
    for half in range(2):
        if half == 0:
            a('v_cmp_lt_u32 vcc, 31, v1'); a('v_cndmask_b32 v8, 0, 1, vcc')
            a('v_cmp_lt_u32 vcc, 63, v1'); a('v_cndmask_b32 v8, v8, 2, vcc')
        else:
            a('v_mov_b32 v8, 3')
        a('v_lshlrev_b32 v9, 3, v1')
        if half: a('v_add_u32 v9, 1024, v9')
        a('v_lshlrev_b32 v10, v8, -1')
        a('v_min_u32 v11, 1, v8')
        a('v_not_b32 v12, v10'); a('v_lshrrev_b32 v12, 1, v12')
        for e in range(8):
            a(f'v_add_u32 v13, {e}, v9')
            a('v_bfe_u32 v14, v13, v8, v11')
            a('v_add3_u32 v13, v13, v12, v14')
            a('v_and_b32 v13, v13, v10')
            a('v_lshl_add_u32 v13, v13, 2, v6')
            a(f'ds_read_b32 v{16+8*half+e}, v13')
    for half in range(2):
        a(f's_waitcnt lgkmcnt({8-8*half})')
        for e in range(4):
            a(f'v_cvt_pk_bf16_f32 v{32+4*half+e}, v{16+8*half+2*e}, v{17+8*half+2*e}')
        a(f'buffer_store_dwordx4 v[{32+4*half}:{35+4*half}], v4, s[24:27], s22 offen offset:{2048*half} sc1')
    a(f's_branch {ex}')

JOBS = [('k0_kgen', 288), ('k0_T', 64), ('k0_mod', 108)]
def gen_k0(a, kidx=0):
    name = 'k0_kernel'
    kstart(a, name, 112)
    n = dispatch(a, name, JOBS)
    ex = f'{name}_exit'
    fn = dict(k0_T=job_T, k0_mod=job_mod, k0_kgen=job_kgen, k0_P2=job_P2, k0_P3=job_P3)
    for lab, cnt in JOBS:
        a.label(lab); fn[lab](a, ex)
    kexit(a, name, kidx)
    return dict(name=name, grid=n, block=256, lds=max(32*RSL, 2*KG_CH), vgpr=116, accum=116, sgpr=102)
```

```python
from common import *
from gen_k0 import tile_load, tile_to_lds, tr_addr, RSL, job_P2, job_P3

CS = 4160
KC_END = 8*CS
HR = KC_END
CONV_LDS = HR + 4608

def job_conv(a, ex):
    a.c('---- job conv')
    a(f's_load_dwordx2 s[8:9], s[0:1], {KA["ws"]}')
    a(f's_load_dwordx2 s[6:7], s[0:1], {KA["Dskip"]}')
    a('s_lshr_b32 s12, s3, 1'); a('s_lshl_b32 s12, s12, 2')
    a('s_lshl_b32 s13, s3, 2')
    a('v_lshlrev_b32 v1, 4, v0')
    a('v_and_b32 v2, 63, v0'); a('v_lshrrev_b32 v3, 6, v0')
    a('v_and_b32 v4, 15, v2'); a('v_lshrrev_b32 v5, 4, v2')
    a('v_subrev_u32 v16, 16, v1'); a('v_max_i32 v16, 0, v16')
    a('v_lshrrev_b32 v17, 2, v0'); a('v_mul_u32_u24 v17, 36864, v17'); a('v_and_b32 v18, 3, v0'); a('v_lshl_add_u32 v17, v18, 4, v17')
    a('v_lshlrev_b32 v18, 5, v0')
    a('v_lshlrev_b32 v6, 9, v3'); a('v_lshl_add_u32 v6, v4, 4, v6'); a('v_lshl_add_u32 v6, v5, 2, v6')
    a('v_lshrrev_b32 v19, 5, v6'); a('v_mul_u32_u24 v19, 36864, v19'); a('v_and_b32 v20, 31, v6'); a('v_lshl_add_u32 v19, v20, 1, v19')
    a('s_lshl_b32 s19, s3, 12'); a(f's_add_u32 s19, s19, {WS_KK}')
    a('s_lshl_b32 s20, s3, 6'); a(f's_add_u32 s20, s20, {WS_XT}')
    a(f's_mov_b32 s21, {WS_RHO}'); a(f's_mov_b32 s22, {WS_MU}'); a(f's_add_u32 s23, s20, {8*36864}')
    a('s_waitcnt lgkmcnt(0)')
    a('s_load_dword s14, s[6:7], s12')
    a(f's_add_u32 s15, s13, {WS_MOD}')
    a('s_load_dword s16, s[8:9], s15')
    a(f's_add_u32 s15, s13, {WS_MOD + 576*4}')
    a('s_load_dword s17, s[8:9], s15')
    a(f's_add_u32 s15, s13, {WS_MOD + 1152*4}')
    a('s_load_dword s18, s[8:9], s15')
    srd(a, 8, 8, WS_SIZE)
    a('buffer_load_dwordx4 v[32:35], v16, s[8:11], s19 offen')
    a('buffer_load_dwordx4 v[36:39], v1, s[8:11], s19 offen')
    a('buffer_load_dwordx4 v[40:43], v17, s[8:11], s20 offen')
    a('buffer_load_dwordx4 v[44:47], v18, s[8:11], s21 offen')
    a('buffer_load_dwordx4 v[48:51], v18, s[8:11], s21 offen offset:16')
    a('buffer_load_dwordx4 v[52:55], v18, s[8:11], s22 offen')
    a('buffer_load_dwordx4 v[56:59], v18, s[8:11], s22 offen offset:16')
    a('buffer_load_dwordx2 v[8:9], v19, s[8:11], s20 offen')
    a('buffer_load_dwordx2 v[10:11], v19, s[8:11], s23 offen')
    for i in range(4): a(f'v_mov_b32 v{64+i}, 0')
    a(f'v_mul_u32_u24 v21, {CS}, v0')
    a(f'v_add_u32 v22, {HR + 4096 - 8*16}, v1')
    a('v_cmp_gt_u32 vcc, 8, v0'); a('v_cndmask_b32 v21, v22, v21, vcc')
    a('v_cmp_gt_u32 vcc, 38, v0')
    a('s_and_saveexec_b64 s[24:25], vcc')
    a('ds_write_b128 v21, v[64:67]')
    a('s_mov_b64 exec, s[24:25]')
    for i in range(32): a(f'v_mov_b32 v{96+i}, 0')
    a('v_and_b32 v12, 7, v4'); a(f'v_mul_u32_u24 v12, {CS}, v12')
    a('v_and_b32 v23, 8, v4'); a('v_lshl_add_u32 v23, v5, 3, v23'); a('v_lshl_add_u32 v23, v3, 6, v23')
    a('v_lshl_add_u32 v12, v23, 1, v12')
    a('v_lshlrev_b32 v13, 4, v4'); a('v_sub_u32 v13, 240, v13'); a('v_lshl_add_u32 v13, v5, 3, v13'); a('v_lshl_add_u32 v13, v3, 6, v13')
    a(f'v_lshlrev_b32 v13, 1, v13'); a(f'v_add_u32 v13, {HR}, v13')
    stamp(a, 0)
    a('s_waitcnt lgkmcnt(0)')
    a('s_and_b32 s15, s3, 1'); a('s_cmp_eq_u32 s15, 0'); a('s_cselect_b32 s15, 16, 0'); a('s_lshl_b32 s14, s14, s15'); a('s_and_b32 s14, s14, 0xffff0000')
    a('v_mov_b32 v60, s17')
    a('v_add_f32 v60, 1.0, v60'); a('v_cvt_pk_bf16_f32 v60, v60, v60'); a('v_and_b32 v60, 0xffff0000, v60'); a('v_mov_b32 v61, v60')
    a('v_mov_b32 v62, s16'); a('v_mov_b32 v63, s16')
    a('v_add_u32 v24, 16, v1')
    a('s_waitcnt vmcnt(7)')
    a('v_cmp_eq_u32 vcc, 0, v0')
    for i in range(4): a(f'v_cndmask_b32 v{32+i}, v{32+i}, 0, vcc')
    for c in range(8):
        off = 1 + c
        r = 32 + off//2
        if off % 2 == 0:
            if r % 2 == 0:
                a(f'ds_write_b128 v24, v[{r}:{r+3}] offset:{c*CS}')
            else:
                t = 68 + 4*((c//2) % 2)
                for i in range(4): a(f'v_mov_b32 v{t+i}, v{r+i}')
                a(f'ds_write_b128 v24, v[{t}:{t+3}] offset:{c*CS}')
        else:
            t = 76 + 4*((c//2) % 2)
            for i in range(4): a(f'v_alignbit_b32 v{t+i}, v{r+i+1}, v{r+i}, 16')
            a(f'ds_write_b128 v24, v[{t}:{t+3}] offset:{c*CS}')
    stamp(a, 1)
    a('s_waitcnt vmcnt(2)')
    for i in range(4):
        a(f'v_lshlrev_b32 v{84+2*i}, 16, v{40+i}'); a(f'v_and_b32 v{85+2*i}, 0xffff0000, v{40+i}')
    for i in range(4):
        a(f'v_pk_fma_f32 v[{84+2*i}:{85+2*i}], v[{84+2*i}:{85+2*i}], v[{44+2*i}:{45+2*i}], v[{52+2*i}:{53+2*i}] neg_lo:[0,0,1] neg_hi:[0,0,1]')
    for i in range(4):
        a(f'v_pk_fma_f32 v[{84+2*i}:{85+2*i}], v[{84+2*i}:{85+2*i}], v[60:61], v[62:63]')
    for i in range(4):
        a(f'v_cvt_pk_bf16_f32 v{92+i}, v{84+7-2*i}, v{84+6-2*i}')
    a(f'v_sub_u32 v25, {HR + 4080}, v1')
    a('ds_write_b128 v25, v[92:95]')
    a('s_waitcnt lgkmcnt(0)')
    a('s_barrier')
    stamp(a, 2)
    AF, FF, ACC = 32, 64, 96
    for ph in range(2):
        po = ph*64
        for m in range(8):
            a(f'ds_read_b128 v[{FF+4*m}:{FF+4*m+3}], v13 offset:{(7-m)*512 + po}')
            a(f'ds_read_b128 v[{AF+4*m}:{AF+4*m+3}], v12 offset:{m*512 + po}')
        for s_ in range(8):
            a(f's_waitcnt lgkmcnt({min(15, 14 - 2*s_)})')
            for m in range(s_+1):
                for u in range(s_+1):
                    if max(m, u) != s_: continue
                    n = m + u
                    if n > 7: continue
                    a(f'v_mfma_f32_16x16x32_bf16 v[{ACC+4*n}:{ACC+4*n+3}], v[{AF+4*m}:{AF+4*m+3}], v[{FF+4*u}:{FF+4*u+3}], v[{ACC+4*n}:{ACC+4*n+3}]')
    stamp(a, 3)
    a('v_lshlrev_b32 v16, 4, v2'); a('v_lshl_add_u32 v17, v3, 13, v16')
    a('v_lshl_add_u32 v18, v3, 11, v16')
    a('v_lshlrev_b32 v19, 1, v6'); a(f'v_sub_u32 v19, {HR + 2044*2}, v19'); a('v_subrev_u32 v20, 512, v19')
    a('s_and_b32 s24, s3, 3'); a('s_lshr_b32 s25, s3, 3'); a('s_and_b32 s25, s25, 1'); a('s_lshl_b32 s25, s25, 2'); a('s_add_u32 s24, s24, s25'); a('s_lshl_b32 s24, s24, 1')
    a('v_and_b32 v21, 7, v4'); a('v_lshlrev_b32 v21, 1, v21'); a('v_lshrrev_b32 v22, 1, v5'); a('v_add_u32 v21, v21, v22')
    a('v_xor_b32 v21, s24, v21'); a('v_lshlrev_b32 v21, 4, v21'); a('v_and_b32 v22, 1, v5'); a('v_lshl_add_u32 v21, v22, 3, v21')
    a('v_lshrrev_b32 v22, 3, v4'); a('v_lshl_add_u32 v22, v3, 2, v22')
    a(f'v_mul_u32_u24 v22, {576*256}, v22'); a('v_add_u32 v21, v21, v22')
    a('s_lshl_b32 s25, s3, 8'); a(f's_add_u32 s25, s25, {WS_X1T}'); a(f's_add_u32 s26, s25, {2*576*256}')
    a('s_barrier')
    for n in range(8):
        a(f'ds_write_b128 v17, v[{ACC+4*n}:{ACC+4*n+3}] offset:{n*1024}')
    a('s_waitcnt lgkmcnt(0)')
    a('s_barrier')
    for src in range(4):
        for j in range(2):
            a(f'ds_read_b128 v[{32+16*j+4*src}:{35+16*j+4*src}], v18 offset:{src*8192 + j*1024}')
    a('ds_read_b64 v[64:65], v19')
    a('ds_read_b64 v[66:67], v20')
    a('s_waitcnt vmcnt(0) lgkmcnt(0)')
    for j in range(2):
        b = 32 + 16*j
        for i in range(0, 4, 2):
            a(f'v_pk_add_f32 v[{b+i}:{b+i+1}], v[{b+i}:{b+i+1}], v[{b+4+i}:{b+5+i}]')
            a(f'v_pk_add_f32 v[{b+8+i}:{b+9+i}], v[{b+8+i}:{b+9+i}], v[{b+12+i}:{b+13+i}]')
        for i in range(0, 4, 2):
            a(f'v_pk_add_f32 v[{b+i}:{b+i+1}], v[{b+i}:{b+i+1}], v[{b+8+i}:{b+9+i}]')
        hr = 64 + 2*j; xr = 8 + 2*j; t = 68 + 8*j
        a(f'v_and_b32 v{t}, 0xffff0000, v{hr+1}'); a(f'v_lshlrev_b32 v{t+1}, 16, v{hr+1}')
        a(f'v_and_b32 v{t+2}, 0xffff0000, v{hr}'); a(f'v_lshlrev_b32 v{t+3}, 16, v{hr}')
        for r in range(4): a(f'v_fma_f32 v{b+r}, v{t+r}, s14, v{b+r}')
        a(f'v_lshlrev_b32 v{t+4}, 16, v{xr}'); a(f'v_and_b32 v{t+5}, 0xffff0000, v{xr}')
        a(f'v_lshlrev_b32 v{t+6}, 16, v{xr+1}'); a(f'v_and_b32 v{t+7}, 0xffff0000, v{xr+1}')
        for r in range(4): a(f'v_fma_f32 v{b+r}, v{b+r}, s18, v{t+4+r}')
        a(f'v_cvt_pk_bf16_f32 v{84+2*j}, v{b}, v{b+1}'); a(f'v_cvt_pk_bf16_f32 v{85+2*j}, v{b+2}, v{b+3}')
        a(f'buffer_store_dwordx2 v[{84+2*j}:{85+2*j}], v21, s[8:11], s{25+j} offen sc1')
    a(f's_branch {ex}')

def job_P1(a, ex):
    a.c('---- job P1: w_in fold + re-layout')
    a(f's_load_dwordx2 s[4:5], s[0:1], {KA["w_in"]}')
    a(f's_load_dwordx2 s[8:9], s[0:1], {KA["ws"]}')
    a('s_waitcnt lgkmcnt(0)')
    srd(a, 4, 4, 576*9216)
    srd(a, 8, 8, WS_SIZE)
    a('s_lshr_b32 s20, s3, 3'); a('s_and_b32 s21, s3, 7')
    a(f's_mul_i32 s12, s20, {32*9216}'); a('s_mul_i32 s13, s21, 1152'); a('s_add_u32 s12, s12, s13')
    tile_load(a, 4, 's12', 9216)
    a('v_lshlrev_b32 v4, 2, v1'); a('s_lshl_b32 s13, s20, 7'); a(f's_add_u32 s13, s13, {WS_MOD + 4*576*4}')
    a('buffer_load_dword v48, v4, s[8:11], s13 offen')
    a('s_waitcnt vmcnt(0)')
    a('v_add_f32 v48, 1.0, v48'); a('v_cvt_pk_bf16_f32 v48, v48, v48'); a('v_and_b32 v48, 0xffff0000, v48'); a('v_mov_b32 v49, v48')
    for i in range(36):
        t = 52 + 2*(i % 4)
        a(f'v_lshlrev_b32 v{t}, 16, v{8+i}'); a(f'v_and_b32 v{t+1}, 0xffff0000, v{8+i}')
        a(f'v_pk_mul_f32 v[{t}:{t+1}], v[{t}:{t+1}], v[48:49]')
        a(f'v_cvt_pk_bf16_f32 v{8+i}, v{t}, v{t+1}')
    tile_to_lds(a)
    a('s_waitcnt lgkmcnt(0)')
    a('s_barrier')
    tr_addr(a, 3, 4, wave_bytes=288, m_bytes=32)
    a('v_lshlrev_b32 v50, 4, v4')
    a('v_readfirstlane_b32 s14, v5')
    a('s_lshl_b32 s22, s21, 2'); a('s_add_u32 s22, s22, s14')
    a('s_cmp_lt_u32 s22, 16'); a('s_cselect_b32 s16, 1, 0'); a('s_and_b32 s22, s22, 15')
    a('s_lshl_b32 s17, s22, 1'); a('s_add_u32 s17, s17, s16'); a('s_mul_i32 s17, s17, 18'); a('s_add_u32 s17, s17, s20')
    a('s_mul_i32 s17, s17, 9216'); a(f's_add_u32 s17, s17, {WS_W1T}'); a('s_add_u32 s18, s17, 4096'); a('s_add_u32 s19, s17, 8192')
    for m in range(9):
        a(f's_waitcnt lgkmcnt({min(15, 2*(8-m))})')
        a(f'buffer_store_dwordx4 v[{8+4*m}:{11+4*m}], v50, s[8:11], s{17 + m//4} offen' + (f' offset:{(m % 4)*1024}' if m % 4 else '') + ' sc1')
    a(f's_branch {ex}')

def job_CS(a, ex):
    a.c('---- job CS')
    a(f's_load_dwordx2 s[6:7], s[0:1], {KA["w_in"]}')
    a(f's_load_dwordx2 s[16:17], s[0:1], {KA["ws"]}')
    a('v_and_b32 v1, 3, v0')
    a('v_lshrrev_b32 v2, 2, v0')
    a('v_mul_u32_u24 v3, 9216, v2')
    a('v_lshl_add_u32 v3, v1, 4, v3')
    a('s_lshl_b32 s13, s3, 6')
    a('v_lshlrev_b32 v4, 2, v2')
    a(f's_mov_b32 s20, {WS_MOD + 3*576*4}'); a(f's_mov_b32 s21, {WS_MOD + 4*576*4}')
    a('s_waitcnt lgkmcnt(0)')
    srd(a, 8, 6, 576*9216)
    srd(a, 16, 16, WS_SIZE)
    for i in range(9):
        a(f'buffer_load_dword v{48+i}, v4, s[16:19], s20 offen offset:{i*256}')
        a(f'buffer_load_dword v{58+i}, v4, s[16:19], s21 offen offset:{i*256}')
    for i in range(9):
        a(f'buffer_load_dwordx4 v[{8+4*i}:{11+4*i}], v3, s[8:11], s13 offen')
        if i < 8: a(f's_add_u32 s13, s13, {64*9216}')
    for i in range(16): a(f'v_mov_b32 v{70+i}, 0')
    a('s_waitcnt vmcnt(9)')
    for i in range(9):
        a(f'v_add_f32 v{58+i}, 1.0, v{58+i}'); a(f'v_lshrrev_b32 v{88+i}, 16, v{48+i}')
        a(f'v_cvt_pk_bf16_f32 v{58+i}, 0, v{58+i}'); a(f'v_lshrrev_b32 v{98+i}, 16, v{58+i}')
    for i in range(9):
        a(f's_waitcnt vmcnt({8-i})')
        for k in range(4):
            r = 8+4*i+k
            a(f'v_dot2c_f32_bf16 v{70+2*k}, v{r}, v{98+i}'); a(f'v_dot2c_f32_bf16 v{71+2*k}, v{r}, v{58+i}')
            a(f'v_dot2c_f32_bf16 v{78+2*k}, v{r}, v{88+i}'); a(f'v_dot2c_f32_bf16 v{79+2*k}, v{r}, v{48+i}')
    for m in (4, 8):
        for k in range(16):
            a(f'v_add_f32_dpp v{70+k}, v{70+k}, v{70+k} row_ror:{m} row_mask:0xf bank_mask:0xf')
    a('v_lshrrev_b32 v5, 4, v0'); a('v_lshlrev_b32 v5, 7, v5'); a('v_lshl_add_u32 v5, v1, 5, v5')
    a('v_bfe_u32 v6, v0, 2, 2')
    a('v_cmp_eq_u32 vcc, 0, v6')
    a('s_and_saveexec_b64 s[14:15], vcc')
    a('ds_write_b128 v5, v[70:73]'); a('ds_write_b128 v5, v[74:77] offset:16')
    a('ds_write_b128 v5, v[78:81] offset:2048'); a('ds_write_b128 v5, v[82:85] offset:2064')
    a('s_mov_b64 exec, s[14:15]')
    a('s_waitcnt lgkmcnt(0)')
    a('s_barrier')
    a('v_cmp_gt_u32 vcc, 64, v0')
    a('s_and_saveexec_b64 s[14:15], vcc')
    a(f's_cbranch_execz {ex}')
    a('v_and_b32 v5, 31, v0'); a('v_lshlrev_b32 v5, 2, v5'); a('v_lshrrev_b32 v6, 5, v0'); a('v_lshl_add_u32 v7, v6, 11, v5')
    for i in range(16):
        a(f'ds_read_b32 v{8+i}, v7 offset:{i*128}')
    a('s_waitcnt lgkmcnt(0)')
    for st in (8, 4, 2, 1):
        for i in range(st):
            a(f'v_add_f32 v{8+i}, v{8+i}, v{8+i+st}')
    a(f'v_mul_u32_u24 v6, {WS_BIAS - WS_CS}, v6'); a('v_add_u32 v5, v5, v6')
    a('s_lshl_b32 s13, s3, 7'); a(f's_add_u32 s13, s13, {WS_CS}')
    a('buffer_store_dword v8, v5, s[16:19], s13 offen sc1')
    a(f's_branch {ex}')

JOBS = [('k1_conv', 576), ('k1_P1', 144), ('k1_CS', 144), ('k1_P2', 72)]
def gen_k1(a, kidx=1):
    name = 'k1_kernel'
    kstart(a, name, 14)
    n = dispatch(a, name, JOBS)
    ex = f'{name}_exit'
    fn = dict(k1_conv=job_conv, k1_P1=job_P1, k1_CS=job_CS, k1_P2=job_P2, k1_P3=job_P3)
    for lab, cnt in JOBS:
        a.label(lab); fn[lab](a, ex)
    kexit(a, name, kidx)
    return dict(name=name, grid=n, block=256, lds=max(32*RSL, CONV_LDS), vgpr=128, accum=128, sgpr=102)
```

```python
from common import *

NX, NW = 4, 5
XSLOT, WSLOT = 16384, 18432
XR = 0
WR = NX*XSLOT
SC = WR + NW*WSLOT
KB_LDS = SC + 4*576
NST = 18
GC0 = -2.0*0.7978845608028654*LOG2E
GC1 = GC0*0.044715
DO_P3 = [True]
DO_PF = [False]
OPT = dict()

def red_q(a, r, t):
    for sw in ('v_permlane32_swap_b32', 'v_permlane16_swap_b32'):
        a(f'v_mov_b32 v{t}, v{r}'); a(f'{sw} v{r}, v{t}'); a(f'v_add_f32 v{r}, v{r}, v{t}')

def kb_tile(a, si, sj, t1, t2, src='s2'):
    a(f's_and_b32 s{t1}, {src}, 7'); a(f's_lshr_b32 s{t2}, {src}, 3')
    a(f's_and_b32 s{si}, s{t1}, 1'); a(f's_lshl_b32 s{si}, s{si}, 3'); a(f's_and_b32 s{sj}, s{t2}, 7'); a(f's_add_u32 s{si}, s{si}, s{sj}')
    a(f's_lshr_b32 s{sj}, s{t1}, 1'); a(f's_lshl_b32 s{sj}, s{sj}, 2'); a(f's_lshr_b32 s{t2}, s{t2}, 3'); a(f's_add_u32 s{sj}, s{sj}, s{t2}')

def gen_kb(a, kidx=2):
    name = 'kb_kernel'
    kstart(a, name, 200)
    S = Stream(a)
    a('s_cmp_ge_u32 s2, 256'); a(f's_cbranch_scc1 {name}_exit')
    a(f's_load_dwordx2 s[8:9], s[0:1], {KA["ws"]}')
    a(f's_load_dwordx2 s[4:5], s[0:1], {KA["w_sp"]}')
    kb_tile(a, 16, 17, 18, 19)
    a('v_and_b32 v1, 63, v0'); a('v_lshrrev_b32 v2, 6, v0')
    a('v_readfirstlane_b32 s20, v2')
    a('v_lshlrev_b32 v3, 4, v1')
    a('v_add_u32 v4, 0x10000, v3'); a('v_add_u32 v5, 0x20000, v3')
    a('v_and_b32 v6, 15, v1'); a('v_lshrrev_b32 v7, 4, v1')
    a('s_mul_i32 s21, s20, 5'); a('s_lshl_b32 s22, s20, 2'); a('s_add_u32 s22, s22, 2')
    a('s_movk_i32 s23, 3072')
    a('s_cmp_lt_u32 s20, 2'); a('s_cselect_b32 s21, s21, s22')
    a('s_cselect_b32 s23, 4096, s23')
    a('s_cselect_b64 s[24:25], -1, 1')
    a('s_lshl_b32 s21, s21, 10')
    a(f's_mul_i32 s26, s17, {36*9216}'); a(f's_add_u32 s26, s26, {WS_W1T}'); a('s_add_u32 s26, s26, s21')
    a('s_add_u32 s27, s21, s23')
    a(f's_mul_i32 s28, s16, {576*256}'); a(f's_add_u32 s28, s28, {WS_X1T}'); a('s_lshl_b32 s29, s20, 12'); a('s_add_u32 s28, s28, s29')
    a('s_mul_i32 s33, s17, 576')
    a('s_cmp_lt_u32 s20, 2'); a(f's_cselect_b32 s34, {2304*4}, 0'); a('s_add_u32 s33, s33, s34')
    a('s_and_b32 s34, s20, 1'); a(f's_mul_i32 s34, s34, {WS_BIAS - WS_CS}'); a('s_add_u32 s33, s33, s34'); a(f's_add_u32 s33, s33, {WS_CS}')
    a('s_mul_i32 s34, s20, 576')
    a('s_waitcnt lgkmcnt(0)')
    srd(a, 8, 8, WS_SIZE)
    def lds_base(addr):
        if addr < 0x10000: return 'v3', addr
        if addr < 0x20000: return 'v4', addr - 0x10000
        return 'v5', addr - 0x20000
    def dma_W(n):
        slot = WR + (n % NW)*WSLOT
        ops = []
        ops.append(([f's_add_u32 m0, s21, {slot}', f's_add_u32 s30, s26, {n*WSLOT}'], 'buffer_load_dwordx4 v3, s[8:11], s30 offen lds', []))
        for k in range(1, 4):
            ops.append(([], f'buffer_load_dwordx4 v3, s[8:11], s30 offen offset:{k*1024} lds', []))
        ops.append(([f's_add_u32 m0, s27, {slot}', 's_add_u32 s31, s30, s23', 's_mov_b64 exec, s[24:25]'], 'buffer_load_dwordx4 v3, s[8:11], s31 offen lds', ['s_mov_b64 exec, -1']))
        return [(p, t, q, ('W', n)) for p, t, q in ops]
    def dma_X(m):
        slot = XR + (m % NX)*XSLOT
        ops = [([f's_add_u32 m0, s29, {slot}', f's_add_u32 s32, s28, {m*XSLOT}'], 'buffer_load_dwordx4 v3, s[8:11], s32 offen lds', [])]
        for k in range(1, 4):
            ops.append(([], f'buffer_load_dwordx4 v3, s[8:11], s32 offen offset:{k*1024} lds', []))
        return [(p, t, q, ('X', m)) for p, t, q in ops]
    def issue(op):
        p, t, q, tag = op
        for l in p: a(l)
        S.vmem(t, tag)
        for l in q: a(l)
    for op in dma_X(0): issue(op)
    for op in dma_W(0): issue(op)
    a(f's_add_u32 m0, s34, {SC}')
    a('s_mov_b32 exec_hi, 0xf')
    S.vmem('buffer_load_dwordx4 v3, s[8:11], s33 offen lds', 'CB')
    a('s_mov_b64 exec, -1')
    for n in range(1, NW-1):
        if n < NX-1:
            for op in dma_X(n): issue(op)
        for op in dma_W(n): issue(op)
    srd(a, 4, 4, 2048*4096)
    a('v_lshrrev_b32 v10, 2, v6'); a('v_and_b32 v11, 3, v1')
    a('v_and_b32 v12, 1, v7'); a('v_lshl_add_u32 v12, v12, 2, v10'); a('v_lshlrev_b32 v12, 1, v12')
    a('v_lshl_add_u32 v13, v7, 3, v10'); a('v_lshlrev_b32 v13, 8, v13')
    a('v_and_b32 v14, 1, v11'); a('v_lshl_add_u32 v13, v14, 3, v13')
    a('v_lshrrev_b32 v14, 1, v11'); a('v_lshl_add_u32 v14, v2, 2, v14')
    a('v_xor_b32 v15, v14, v12'); a('v_lshl_add_u32 v8, v15, 4, v13')
    a('v_add_u32 v14, 2, v14'); a('v_xor_b32 v15, v14, v12'); a('v_lshl_add_u32 v9, v15, 4, v13')
    P3R = 168
    if DO_P3[0]:
        a('s_lshl_b32 s35, s2, 2'); a('s_add_u32 s35, s35, s20')
        a('s_lshr_b32 s36, s35, 3'); a('s_and_b32 s37, s35, 7')
        a('v_lshrrev_b32 v16, 2, v1'); a('v_lshlrev_b32 v16, 12, v16'); a('v_and_b32 v17, 3, v1'); a('v_lshl_add_u32 v16, v17, 4, v16')
        a('s_lshl_b32 s38, s36, 16'); a('s_lshl_b32 s39, s37, 9'); a('s_add_u32 s38, s38, s39')
        a('s_lshr_b32 s39, s36, 1'); a('s_lshl_b32 s39, s39, 17'); a('s_and_b32 s40, s36, 1'); a('s_lshl_b32 s40, s40, 10'); a('s_add_u32 s39, s39, s40')
        a('s_lshl_b32 s40, s37, 14'); a('s_add_u32 s39, s39, s40'); a(f's_add_u32 s39, s39, {WS_WSP}')
        a('s_lshl_b32 s54, s20, 13')
        a('v_lshlrev_b32 v17, 6, v6'); a('v_lshl_add_u32 v17, v7, 4, v17'); a('v_add_u32 v17, s54, v17')
    XF, WF, ACC1 = 0, 144, 180
    ACC2 = 96
    ONE, GR, ONES = 20, 28, 36
    for i in range(4): a(f'v_mov_b32 v{ONES+i}, 0x3f803f80')
    for i in range(16): a(f'v_mov_b32 v{ONE+i}, 0')
    for i in range(72): a(f'v_mov_b32 v{ACC2+i}, 0')
    for i in range(72): a(f'v_accvgpr_write_b32 a{ACC1+i}, 0')
    def rdW(g, ii):
        n, u = g >> 1, g & 1
        b, o = lds_base(WR + (n % NW)*WSLOT + u*9216 + ii*1024)
        S.ds(f'ds_read_b128 a[{WF+4*ii}:{WF+4*ii+3}], {b} offset:{o}', ('w', g, ii))
    def rdX(Sx):
        m, u = Sx >> 1, Sx & 1
        base = XR + (m % NX)*XSLOT + u*8192
        ops = []
        for jj in range(2):
            for h in range(2):
                r = XF + (Sx*2 + jj)*4 + 2*h
                ops.append((f'ds_read_b64_tr_b16 a[{r}:{r+1}], v{8+jj} offset:{base + h*1024}', ('x', Sx)))
        return ops
    S.wait_vm(('X', 0), ('W', 0), 'CB')
    a('s_barrier')
    stamp(a, 0)
    for t, tag in rdX(0): S.ds(t, tag)
    for ii in range(9): rdW(0, ii)

    RM = 40
    CBR = 44
    T = 60
    SA, QA = 76, 80
    a(f'v_mov_b32 v84, {H(GC0)}'); a(f'v_mov_b32 v85, {H(GC1)}')
    a('s_mov_b32 s46, 1.0'); a('s_mov_b32 s47, 1.0')
    for i in range(8): a(f'v_mov_b32 v{SA+i}, 0')
    a(f'v_lshlrev_b32 v18, 4, v7'); a(f'v_add_u32 v18, {SC - 0x20000}, v18'); a('v_add_u32 v18, 0x20000, v18')
    def cb_reads(ii, off):
        cb = CBR + 8*(ii % 2)
        S.ds(f'ds_read_b128 v[{cb}:{cb+3}], v18 offset:{off + ii*64}', ('cb', off, ii))
        S.ds(f'ds_read_b128 v[{cb+4}:{cb+7}], v18 offset:{off + 576 + ii*64}', ('cb', off, ii))
    def fold_ops(src, jj, cb, t):
        rm = RM + 2*jj
        ops = []
        for p in range(2):
            ops.append(f'v_pk_fma_f32 v[{t+2*p}:{t+2*p+1}], v[{rm}:{rm+1}], v[{cb+2*p}:{cb+2*p+1}], v[{cb+4+2*p}:{cb+5+2*p}] op_sel:[1,0,0] op_sel_hi:[1,1,1] neg_lo:[1,0,0] neg_hi:[1,0,0]')
        for p in range(2):
            ops.append(f'v_pk_fma_f32 v[{src+2*p}:{src+2*p+1}], v[{src+2*p}:{src+2*p+1}], v[{rm}:{rm+1}], v[{t+2*p}:{t+2*p+1}] op_sel:[0,0,0] op_sel_hi:[1,0,1]')
        return ops
    def gelu_ops(src, t):
        ops = []
        for p in range(2): ops.append(f'v_pk_mul_f32 v[{t+2*p}:{t+2*p+1}], v[{src+2*p}:{src+2*p+1}], v[{src+2*p}:{src+2*p+1}]')
        for p in range(2): ops.append(f'v_pk_fma_f32 v[{t+2*p}:{t+2*p+1}], v[{t+2*p}:{t+2*p+1}], v[84:85], v[84:85] op_sel:[0,1,0] op_sel_hi:[1,1,0]')
        for p in range(2): ops.append(f'v_pk_mul_f32 v[{t+2*p}:{t+2*p+1}], v[{t+2*p}:{t+2*p+1}], v[{src+2*p}:{src+2*p+1}]')
        for k in range(4): ops.append(f'v_exp_f32 v{t+k}, v{t+k}')
        for p in range(2): ops.append(f'v_pk_add_f32 v[{t+2*p}:{t+2*p+1}], v[{t+2*p}:{t+2*p+1}], s[46:47]')
        for k in range(4): ops.append(f'v_rcp_f32 v{t+k}, v{t+k}')
        for p in range(2): ops.append(f'v_pk_mul_f32 v[{src+2*p}:{src+2*p+1}], v[{src+2*p}:{src+2*p+1}], v[{t+2*p}:{t+2*p+1}]')
        return ops

    def mid_section():
        if DO_P3[0]:
            a('s_barrier')
        a('s_nop 7')
        a('v_and_b32 v60, 3, v6'); a('v_lshrrev_b32 v61, 2, v6')
        a('v_cmp_eq_u32 s[40:41], 1, v60'); a('v_cmp_eq_u32 s[42:43], 2, v60'); a('v_cmp_eq_u32 s[44:45], 3, v60'); a('v_cmp_eq_u32 s[48:49], v61, v7')
        for jj in range(2):
            g_ = GR + 4*jj
            a(f'v_cndmask_b32 v{g_}, v{g_}, v{g_+1}, s[40:41]'); a(f'v_cndmask_b32 v{g_}, v{g_}, v{g_+2}, s[42:43]'); a(f'v_cndmask_b32 v{g_}, v{g_}, v{g_+3}, s[44:45]')
            a(f'v_cndmask_b32 v{g_}, 0, v{g_}, s[48:49]')
        cb_reads(0, 0)
        for jj in range(2): red_q(a, GR + 4*jj, 62 + jj)
        for jj in range(2):
            sm, sq = ONE + 4*jj, GR + 4*jj
            a(f'v_mul_f32 v{sm}, {H(1/576)}, v{sm}'); a(f'v_mul_f32 v{sq}, {H(1/576)}, v{sq}')
            a(f'v_fma_f32 v{sq}, -v{sm}, v{sm}, v{sq}'); a(f'v_max_f32 v{sq}, 0, v{sq}'); a(f'v_add_f32 v{sq}, {H(1e-5)}, v{sq}')
            a(f'v_rsq_f32 v{RM+2*jj}, v{sq}'); a(f'v_mul_f32 v{RM+2*jj+1}, v{sm}, v{RM+2*jj}')
        for ii in range(9):
            if ii + 1 < 9: cb_reads(ii+1, 0)
            if DO_P3[0] and ii < 8:
                a(f's_add_u32 m0, s54, {ii*1024}'); a(f's_add_u32 s55, s38, {ii*64}')
                S.vmem('buffer_load_dwordx4 v16, s[4:7], s55 offen lds', 'P3')
            S.wait_lg(('cb', 0, ii))
            cb = CBR + 8*(ii % 2)
            chains = []
            for jj in range(2):
                src = ACC2 + (ii*2 + jj)*4; t = T + 8*jj
                ops = fold_ops(src, jj, cb, t) + gelu_ops(src, t + 4)
                for p in range(2):
                    ops.append(f'v_pk_add_f32 v[{SA+2*jj}:{SA+2*jj+1}], v[{SA+2*jj}:{SA+2*jj+1}], v[{src+2*p}:{src+2*p+1}]')
                    ops.append(f'v_pk_fma_f32 v[{QA+2*jj}:{QA+2*jj+1}], v[{src+2*p}:{src+2*p+1}], v[{src+2*p}:{src+2*p+1}], v[{QA+2*jj}:{QA+2*jj+1}]')
                chains.append(ops)
            for x, y in zip(*chains): a(x); a(y)
        for jj in range(2):
            a(f'v_add_f32 v{SA+2*jj}, v{SA+2*jj}, v{SA+2*jj+1}'); a(f'v_add_f32 v{QA+2*jj}, v{QA+2*jj}, v{QA+2*jj+1}')
        for r in (SA, SA+2, QA, QA+2): red_q(a, r, T)
        a(f'v_mov_b32 v{SA+1}, v{QA}'); a(f'v_mov_b32 v{SA+3}, v{QA+2}')
        a('v_lshl_add_u32 v60, v2, 5, v6'); a('v_lshlrev_b32 v60, 7, v60')
        a(f's_lshl_b32 s48, s16, 14'); a('s_lshl_b32 s49, s17, 3'); a('s_add_u32 s48, s48, s49'); a(f's_add_u32 s48, s48, {WS_Z2ST}')
        a('s_mov_b64 exec, 0xffff')
        S.vmem(f'buffer_store_dwordx2 v[{SA}:{SA+1}], v60, s[8:11], s48 offen sc1', 'pub')
        S.vmem(f'buffer_store_dwordx2 v[{SA+2}:{SA+3}], v60, s[8:11], s48 offen offset:2048 sc1', 'pub')
        a('s_mov_b64 exec, -1')

    def signal():
        lab = a.newlabel('kb_noatom')
        a('s_cmp_lg_u32 s20, 0'); a(f's_cbranch_scc1 {lab}')
        a('s_lshl_b32 s49, s16, 8'); a(f's_add_u32 s49, s49, {WS_CNT}')
        a('v_mov_b32 v61, 1'); a('v_mov_b32 v62, 0')
        a('s_mov_b64 exec, 1')
        a('buffer_atomic_add v61, v62, s[8:11], s49 offen sc1')
        a('s_mov_b64 exec, -1')
        a.label(lab)

    NG = 36
    vm_q = []
    signalled = False
    p3_issued = False
    for g in range(NG):
        n, u = g >> 1, g & 1
        pass2 = g >= 18
        Sx = g if not pass2 else g - 18
        if g == 18:
            stamp(a, 1)
            mid_section()
            stamp(a, 2)
        if u == 1 and n + 1 < NST:
            tags = [('W', n+1)]
            if n + 1 < 9: tags.append(('X', n+1))
            sig_now = pass2 and not signalled and g >= 21
            if sig_now: tags.append('pub')
            S.wait_vm(*tags)
            a('s_barrier')
            if sig_now:
                signal(); signalled = True
            if n + NW - 1 < NST: vm_q += dma_W(n + NW - 1)
            if n + NX - 1 < 9: vm_q += dma_X(n + NX - 1)
        lds_q = rdX(Sx + 1) if (not pass2 and Sx + 1 < 18) else []
        st = []
        if not pass2:
            S.wait_lg(('x', Sx))
            xf = [XF + (Sx*2 + jj)*4 for jj in range(2)]
            st = [f'v_mfma_f32_16x16x32_bf16 v[{ONE+4*jj}:{ONE+4*jj+3}], v[{ONES}:{ONES+3}], a[{xf[jj]}:{xf[jj]+3}], v[{ONE+4*jj}:{ONE+4*jj+3}]' for jj in range(2)]
            st += [f'v_mfma_f32_16x16x32_bf16 v[{GR+4*jj}:{GR+4*jj+3}], a[{xf[jj]}:{xf[jj]+3}], a[{xf[jj]}:{xf[jj]+3}], v[{GR+4*jj}:{GR+4*jj+3}]' for jj in range(2)]
        if g == 30 and DO_PF[0]:
            a('s_lshl_b32 s38, s2, 2'); a('s_add_u32 s38, s38, s20'); a('s_lshl_b32 s38, s38, 13'); a('s_add_u32 s39, s38, 4096')
            for i in range(8):
                vm_q.append(([], f'buffer_load_dwordx4 v[{P3R+4*(i%2)}:{P3R+4*(i%2)+3}], v3, s[4:7], s{38 + i//4} offen' + (f' offset:{(i%4)*1024}' if i % 4 else ''), [], ('PF', i)))
        p3_q = []
        if DO_P3[0] and g in (22, 23):
            h = g - 22
            if h == 0: S.wait_vm('P3')
            for i in range(4*h, 4*h + 4):
                S.ds(f'ds_read_b128 v[{P3R+4*i}:{P3R+4*i+3}], v17 offset:{i*1024}', ('p3r', i))
        if DO_P3[0] and g in (23, 24):
            h = g - 23
            for i in range(4*h, 4*h + 4):
                p3_q.append(i)
        for ii in range(9):
            S.wait_lg(('w', g, ii))
            for jj in range(2):
                xr = XF + (Sx*2 + jj)*4
                if not pass2: acc = f'v[{ACC2+(ii*2+jj)*4}:{ACC2+(ii*2+jj)*4+3}]'
                else: acc = f'a[{ACC1+(ii*2+jj)*4}:{ACC1+(ii*2+jj)*4+3}]'
                a(f'v_mfma_f32_16x16x32_bf16 {acc}, a[{WF+4*ii}:{WF+4*ii+3}], a[{xr}:{xr+3}], {acc}')
                if jj == 0:
                    if lds_q:
                        t, tag = lds_q.pop(0); S.ds(t, tag)
                    if vm_q: issue(vm_q.pop(0))
            if g + 1 < NG: rdW(g + 1, ii)
            if st and ii % 2 == 1: a(st.pop(0))
            if p3_q and ii % 2 == 1:
                i = p3_q.pop(0)
                S.wait_lg(('p3r', i))
                a(f's_add_u32 s40, s39, {i*2048}')
                S.vmem(f'buffer_store_dwordx4 v[{P3R+4*i}:{P3R+4*i+3}], v3, s[8:11], s40 offen sc1', ('P3s', i))
        assert not lds_q and not st
    assert not vm_q and signalled
    stamp(a, 3)
    lab = a.newlabel('kb_nopoll'); lp = a.newlabel('kb_poll')
    a('s_cmp_lg_u32 s20, 0'); a(f's_cbranch_scc1 {lab}')
    a('s_lshl_b32 s49, s16, 8'); a(f's_add_u32 s49, s49, {WS_CNT}')
    a('v_mov_b32 v62, 0'); a('s_mov_b32 s53, 0x100000')
    a.label(lp)
    a('buffer_load_dword v61, v62, s[8:11], s49 offen sc1')
    a('s_waitcnt vmcnt(0)')
    a('v_readfirstlane_b32 s52, v61')
    a('s_sub_u32 s53, s53, 1'); a('s_cmp_eq_u32 s53, 0'); a(f's_cbranch_scc1 {lab}')
    a('s_cmp_ge_u32 s52, 16')
    a(f's_cbranch_scc1 {lab}')
    a('s_sleep 1')
    a(f's_branch {lp}')
    a.label(lab)
    a('s_barrier')
    a('v_lshl_add_u32 v60, v2, 5, v6'); a('v_lshlrev_b32 v60, 7, v60'); a('v_lshl_add_u32 v60, v7, 5, v60')
    a(f's_lshl_b32 s48, s16, 14'); a(f's_add_u32 s48, s48, {WS_Z2ST}')
    for jj in range(2):
        S.vmem(f'buffer_load_dwordx4 v[{20+8*jj}:{23+8*jj}], v60, s[8:11], s48 offen offset:{jj*2048} sc1', 'part')
        S.vmem(f'buffer_load_dwordx4 v[{24+8*jj}:{27+8*jj}], v60, s[8:11], s48 offen offset:{jj*2048+16} sc1', 'part')
    cb_reads(0, 1152)
    a('s_lshl_b32 s50, s16, 4'); a('s_add_u32 s50, s50, s17'); a('s_lshl_b32 s50, s50, 2'); a('s_add_u32 s50, s50, s20'); a('s_mul_i32 s50, s50, 9216'); a(f's_add_u32 s50, s50, {WS_Z1}')
    for ii in range(9):
        if ii + 1 < 9: cb_reads(ii+1, 1152)
        for jj in range(2):
            for k in range(4): a(f'v_accvgpr_read_b32 v{88+4*jj+k}, a{ACC1+(ii*2+jj)*4+k}')
        S.wait_lg(('cb', 1152, ii))
        cb = CBR + 8*(ii % 2)
        Z = 88
        for x, y in zip(fold_ops(Z, 0, cb, T), fold_ops(Z + 4, 1, cb, T+8)):
            a(x); a(y)
        pk = 76 + 4*(ii % 2)
        a(f'v_cvt_pk_bf16_f32 v{pk}, v{Z}, v{Z+1}'); a(f'v_cvt_pk_bf16_f32 v{pk+1}, v{Z+2}, v{Z+3}')
        a(f'v_cvt_pk_bf16_f32 v{pk+2}, v{Z+4}, v{Z+5}'); a(f'v_cvt_pk_bf16_f32 v{pk+3}, v{Z+6}, v{Z+7}')
        a(f's_add_u32 s51, s50, {ii*1024}')
        S.vmem(f'buffer_store_dwordx4 v[{pk}:{pk+3}], v3, s[8:11], s51 offen sc1', 'z1')
    S.wait_vm('part')
    for jj in range(2):
        b = 20 + 8*jj
        a(f'v_pk_add_f32 v[{b}:{b+1}], v[{b}:{b+1}], v[{b+2}:{b+3}]'); a(f'v_pk_add_f32 v[{b+4}:{b+5}], v[{b+4}:{b+5}], v[{b+6}:{b+7}]')
        a(f'v_pk_add_f32 v[{b}:{b+1}], v[{b}:{b+1}], v[{b+4}:{b+5}]')
    for r in (20, 21, 28, 29): red_q(a, r, T)
    for jj in range(2):
        b = 20 + 8*jj
        a(f'v_mul_f32 v{b}, {H(1/2304)}, v{b}'); a(f'v_mul_f32 v{b+1}, {H(1/2304)}, v{b+1}')
        a(f'v_fma_f32 v{b+1}, -v{b}, v{b}, v{b+1}'); a(f'v_max_f32 v{b+1}, 0, v{b+1}'); a(f'v_add_f32 v{b+1}, {H(1e-5)}, v{b+1}')
        a(f'v_rsq_f32 v{RM+2*jj}, v{b+1}'); a(f'v_mul_f32 v{RM+2*jj+1}, v{b}, v{RM+2*jj}')
    RS = 304
    a(f'v_mul_u32_u24 v60, {RS}, v6'); a('v_lshl_add_u32 v60, v7, 3, v60'); a(f'v_mul_u32_u24 v61, {32*RS}, v2'); a(f'v_add_u32 v61, {WR}, v61'); a('v_add_u32 v60, v60, v61')
    a('v_lshrrev_b32 v62, 2, v6'); a('v_lshl_add_u32 v62, v7, 3, v62'); a(f'v_mul_u32_u24 v62, {RS}, v62'); a('v_and_b32 v63, 3, v1'); a('v_lshl_add_u32 v62, v63, 3, v62'); a('v_add_u32 v62, v62, v61')
    for ii in range(9):
        for jj in range(2):
            src = ACC2 + (ii*2 + jj)*4; rm = RM + 2*jj
            for p in range(2):
                a(f'v_pk_fma_f32 v[{src+2*p}:{src+2*p+1}], v[{src+2*p}:{src+2*p+1}], v[{rm}:{rm+1}], v[{rm}:{rm+1}] op_sel:[0,0,1] op_sel_hi:[1,0,1] neg_lo:[0,0,1] neg_hi:[0,0,1]')
        for jj in range(2):
            src = ACC2 + (ii*2 + jj)*4
            a(f'v_cvt_pk_bf16_f32 v{src}, v{src}, v{src+1}'); a(f'v_cvt_pk_bf16_f32 v{src+1}, v{src+2}, v{src+3}')
        for jj in range(2):
            src = ACC2 + (ii*2 + jj)*4
            S.ds(f'ds_write_b64 v60, v[{src}:{src+1}] offset:{jj*16*RS + ii*32}', 'tw')
    S.wait_lg_all()
    for ii in range(9):
        r = 20 + 4*ii
        S.ds(f'ds_read_b64_tr_b16 v[{r}:{r+1}], v62 offset:{ii*32}', ('tr', ii))
        S.ds(f'ds_read_b64_tr_b16 v[{r+2}:{r+3}], v62 offset:{4*RS + ii*32}', ('tr', ii))
    a('s_lshl_b32 s50, s17, 6'); a('s_lshl_b32 s51, s16, 2'); a('s_add_u32 s50, s50, s51'); a('s_add_u32 s50, s50, s20')
    a('s_mul_i32 s50, s50, 9216'); a(f's_add_u32 s50, s50, {WS_Z2T}')
    for ii in range(9):
        r = 20 + 4*ii
        S.wait_lg(('tr', ii))
        a(f's_add_u32 s51, s50, {ii*1024}')
        S.vmem(f'buffer_store_dwordx4 v[{r}:{r+3}], v3, s[8:11], s51 offen sc1', 'z2')
    kexit(a, name, kidx)
    return dict(name=name, grid=256, block=256, lds=KB_LDS, vgpr=204+252, accum=204, sgpr=102)
```

```python
from common import *
from gen_kb import GC0, GC1

SLOT = 36864
NSL = 4
KC_LDS = NSL*SLOT
NST = 16
OPT = dict(hide_gelu=True, z1_at=4, gelu_at=14, wait3=True, vm_every=2, probar=True)

def gen_kc(a, kidx=3):
    name = 'kc_kernel'
    kstart(a, name, 180, nloads=2)
    S = Stream(a)
    a('s_cmp_ge_u32 s2, 256'); a(f's_cbranch_scc1 {name}_exit')
    a(f's_load_dwordx2 s[8:9], s[0:1], {KA["ws"]}')
    a(f's_load_dwordx2 s[4:5], s[0:1], {KA["b_sp"]}')
    xcd_tile(a, 16, 17, 18, 19)
    a('v_and_b32 v1, 63, v0'); a('v_lshrrev_b32 v7, 6, v0')
    a('v_readfirstlane_b32 s20, v7')
    a('v_lshlrev_b32 v2, 4, v1')
    a('v_add_u32 v3, 0x10000, v2'); a('v_add_u32 v4, 0x20000, v2')
    a(f's_mul_i32 s34, s17, {64*9216}'); a(f's_add_u32 s34, s34, {WS_Z2T}')
    a('s_mul_i32 s31, s20, 9216')
    a('s_add_u32 s24, s34, s31')
    a('s_lshl_b32 s25, s16, 2'); a('s_add_u32 s25, s25, s20'); a('s_lshl_b32 s25, s25, 17'); a(f's_add_u32 s25, s25, {WS_WSP}')
    a('s_waitcnt lgkmcnt(0)')
    srd(a, 8, 8, WS_SIZE)
    srd(a, 4, 4, 2048*2)
    IF = 12
    ACC = 48
    Z1 = 120
    BS = 156
    T = 158
    JF = 0
    def lds_base(addr):
        if addr < 0x10000: return 'v2', addr
        if addr < 0x20000: return 'v3', addr - 0x10000
        return 'v4', addr - 0x20000
    def jreg(n, u, jj): return JF + (((n % 4)*4 + u)*2 + jj)*4
    def loads(n):
        slot = (n % NSL)*SLOT; tag = ('D', n)
        d = []
        for p in range(9):
            pre = []
            if p % 4 == 0:
                pre = [f's_add_u32 m0, s31, {slot+p*1024}', f's_add_u32 s26, s24, {n*4*9216 + p*1024}']
            o = f' offset:{(p%4)*1024}' if p % 4 else ''
            d.append((pre, f'buffer_load_dwordx4 v2, s[8:11], s26 offen{o} lds', [], tag))
        j = []
        for x in range(8):
            pre = [f's_add_u32 s27, s25, {n*8192 + x*1024}'] if x % 4 == 0 else []
            r = jreg(n, x//2, x % 2)
            o = f' offset:{(x%4)*1024}' if x % 4 else ''
            j.append((pre, f'buffer_load_dwordx4 a[{r}:{r+3}], v2, s[8:11], s27 offen{o}', [], tag))
        out = []
        while d or j:
            if d: out.append(d.pop(0))
            if j: out.append(j.pop(0))
        return out
    def issue(op):
        p, t, q, tag = op
        for l in p: a(l)
        S.vmem(t, tag)
        for l in q: a(l)
    for op in loads(0): issue(op)
    if OPT['probar']: a('s_barrier')
    for n in range(1, NSL-1):
        for op in loads(n): issue(op)
    for i in range(72): a(f'v_mov_b32 v{ACC+i}, 0')
    a('v_and_b32 v8, 15, v1'); a('v_lshlrev_b32 v8, 1, v8')
    def rdI(g, ii):
        n, u = g >> 2, g & 3
        b, o = lds_base((n % NSL)*SLOT + u*9216 + ii*1024)
        S.ds(f'ds_read_b128 v[{IF+4*ii}:{IF+4*ii+3}], {b} offset:{o}', ('i', g, ii))
    S.wait_vm(('D', 0))
    a('s_barrier')
    stamp(a, 0)
    for ii in range(9): rdI(0, ii)
    a(f's_mov_b32 s53, {H(GC1)}'); a(f'v_mov_b32 v{T+20}, {H(GC0)}')
    def gelu_list():
        ops = []
        for k0 in range(0, 36, 2):
            regs = [Z1 + k0, Z1 + k0 + 1]
            x = [T + 0, T + 1, T + 2, T + 3]; t = [T + 4, T + 5, T + 6, T + 7]
            if (k0//2) % 2: x = [v + 8 for v in x]; t = [v + 8 for v in t]
            ops += [f'v_lshlrev_b32 v{x[0]}, 16, v{regs[0]}', f'v_and_b32 v{x[1]}, 0xffff0000, v{regs[0]}', f'v_lshlrev_b32 v{x[2]}, 16, v{regs[1]}', f'v_and_b32 v{x[3]}, 0xffff0000, v{regs[1]}']
            ops += [f'v_mul_f32 v{t[i]}, v{x[i]}, v{x[i]}' for i in range(4)]
            ops += [f'v_fma_f32 v{t[i]}, v{t[i]}, s53, v{T+20}' for i in range(4)]
            ops += [f'v_mul_f32 v{t[i]}, v{t[i]}, v{x[i]}' for i in range(4)]
            ops += [f'v_exp_f32 v{t[i]}, v{t[i]}' for i in range(4)]
            ops += [f'v_add_f32 v{t[i]}, 1.0, v{t[i]}' for i in range(4)]
            ops += [f'v_rcp_f32 v{t[i]}, v{t[i]}' for i in range(4)]
            ops += [f'v_mul_f32 v{x[i]}, v{x[i]}, v{t[i]}' for i in range(4)]
            ops += [f'v_cvt_pk_bf16_f32 v{regs[0]}, v{x[0]}, v{x[1]}', f'v_cvt_pk_bf16_f32 v{regs[1]}, v{x[2]}, v{x[3]}']
        return ops
    NG = 4*NST
    vm_q = []; valu_q = []
    def fill(k, kmax):
        while valu_q and k < kmax:
            it = valu_q[0]
            if it[0] == 'wv':
                valu_q.pop(0); S.wait_vm(it[1]); continue
            c = 2 if ('v_exp' in it[1] or 'v_rcp' in it[1]) else 1
            if k + c > kmax and k > 0: break
            valu_q.pop(0); a(it[1]); k += c
        return k
    for g in range(NG):
        n, u = g >> 2, g & 3
        if u == 3 and n + 1 < NST:
            S.wait_vm(('D', n+1))
            a('s_barrier')
            if n + NSL - 1 < NST: vm_q += loads(n + NSL - 1)
        if g == OPT['z1_at']:
            a('s_lshl_b32 s40, s16, 4'); a('s_add_u32 s40, s40, s17'); a('s_lshl_b32 s40, s40, 2'); a('s_add_u32 s40, s40, s20'); a('s_mul_i32 s40, s40, 9216'); a(f's_add_u32 s40, s40, {WS_Z1}')
            a('s_add_u32 s41, s40, 4096'); a('s_add_u32 s42, s40, 8192')
            a('s_lshl_b32 s43, s16, 8'); a('s_lshl_b32 s44, s20, 6'); a('s_add_u32 s43, s43, s44')
            for ii in range(9):
                vm_q.append(([], f'buffer_load_dwordx4 v[{Z1+4*ii}:{Z1+4*ii+3}], v2, s[8:11], s{40 + ii//4} offen' + (f' offset:{(ii % 4)*1024}' if ii % 4 else ''), [], 'Z1'))
            vm_q.append(([], f'buffer_load_ushort v{BS}, v8, s[4:7], s43 offen', [], 'Z1'))
            vm_q.append(([], f'buffer_load_ushort v{BS+1}, v8, s[4:7], s43 offen offset:32', [], 'Z1'))
        if g == OPT['gelu_at'] and OPT['hide_gelu']:
            valu_q += [('wv', 'Z1')] + [('v', t) for t in gelu_list()]
        for ii in range(9):
            if OPT['wait3']:
                if ii % 3 == 0: S.wait_lg(('i', g, min(ii + 2, 8)))
            else: S.wait_lg(('i', g, ii))
            for jj in range(2):
                ac = ACC + (ii*2+jj)*4; r = jreg(n, u, jj)
                a(f'v_mfma_f32_16x16x32_bf16 v[{ac}:{ac+3}], v[{IF+ii*4}:{IF+ii*4+3}], a[{r}:{r+3}], v[{ac}:{ac+3}]')
                if jj == 0:
                    k = 0
                    if vm_q and (ii % OPT['vm_every'] == 0 or len(vm_q) > 17):
                        issue(vm_q.pop(0)); k += 2
                    fill(k, 2)
            if g + 1 < NG: rdI(g + 1, ii)
            if (ii + 1) % 3 != 0: fill(0, 1)
    assert not vm_q
    stamp(a, 2)
    if not OPT['hide_gelu']:
        S.wait_vm('Z1')
        for t in gelu_list(): a(t)
    else:
        for it in valu_q:
            if it[0] == 'v': a(it[1])
        print('kc: gelu ops left after main loop:', len(valu_q))
    a(f'v_lshlrev_b32 v{BS}, 16, v{BS}'); a(f'v_lshlrev_b32 v{BS+1}, 16, v{BS+1}')
    a('s_lshl_b32 s40, s16, 1'); a('s_lshr_b32 s41, s20, 1'); a('s_add_u32 s40, s40, s41'); a(f's_mul_i32 s40, s40, {72*4096}')
    a('s_and_b32 s41, s20, 1'); a('s_lshl_b32 s41, s41, 11'); a('s_add_u32 s40, s40, s41'); a(f's_add_u32 s40, s40, {WS_ZG}')
    a('s_mul_i32 s41, s17, 9')
    a('s_lshr_b32 s42, s41, 1'); a('s_lshl_b32 s42, s42, 12'); a('s_add_u32 s40, s40, s42')
    for ii in range(9):
        for jj in range(2):
            z = Z1 + 4*ii + 2*jj; x = T + 4*jj
            a(f'v_lshlrev_b32 v{x}, 16, v{z}'); a(f'v_and_b32 v{x+1}, 0xffff0000, v{z}'); a(f'v_lshlrev_b32 v{x+2}, 16, v{z+1}'); a(f'v_and_b32 v{x+3}, 0xffff0000, v{z+1}')
        for jj in range(2):
            ac = ACC + (ii*2+jj)*4
            for p in range(2):
                a(f'v_pk_add_f32 v[{ac+2*p}:{ac+2*p+1}], v[{ac+2*p}:{ac+2*p+1}], v[{BS}:{BS+1}] op_sel:[0,{jj}] op_sel_hi:[1,{jj}]')
        for jj in range(2):
            ac = ACC + (ii*2+jj)*4; x = T + 4*jj
            for p in range(2):
                a(f'v_pk_mul_f32 v[{ac+2*p}:{ac+2*p+1}], v[{ac+2*p}:{ac+2*p+1}], v[{x+2*p}:{x+2*p+1}]')
        for jj in range(2):
            ac = ACC + (ii*2+jj)*4
            d = IF + jj*18 + 2*ii
            a(f'v_cvt_pk_bf16_f32 v{d}, v{ac}, v{ac+1}'); a(f'v_cvt_pk_bf16_f32 v{d+1}, v{ac+2}, v{ac+3}')
    odd = a.newlabel('kc_odd')
    a('s_bitcmp1_b32 s17, 0'); a(f's_cbranch_scc1 {odd}')
    for par in range(2):
        if par == 1: a.label(odd)
        ii = 0
        while ii < 9:
            G = par + ii
            srel = G >> 1
            for jj in range(2):
                d = IF + jj*18 + 2*ii
                a(f's_add_u32 s43, s40, {srel*4096 + jj*1024 + (0 if (G % 2 == 0) else 8)}')
                if G % 2 == 0 and ii + 1 < 9:
                    a(f'buffer_store_dwordx4 v[{d}:{d+3}], v2, s[8:11], s43 offen sc1')
                else:
                    a(f'buffer_store_dwordx2 v[{d}:{d+1}], v2, s[8:11], s43 offen sc1')
            ii += 2 if (G % 2 == 0 and ii + 1 < 9) else 1
        if par == 0: a(f's_branch {name}_exit')
    kexit(a, name, kidx)
    return dict(name=name, grid=256, block=256, lds=KC_LDS, vgpr=184+128, accum=184, sgpr=102)
```

```python
from common import *

PD = 5
KD_LDS = 80*1024 + 20*1024
def gen_kd(a, kidx=4):
    name = 'kd_kernel'
    kstart(a, name, 208)
    a('s_cmp_ge_u32 s2, 256'); a(f's_cbranch_scc1 {name}_exit')
    a(f's_load_dwordx2 s[8:9], s[0:1], {KA["ws"]}')
    a(f's_load_dwordx2 s[4:5], s[0:1], {KA["out"]}')
    a('s_and_b32 s18, s2, 7'); a('s_lshr_b32 s19, s2, 3')
    a('s_and_b32 s16, s18, 3'); a('s_lshl_b32 s16, s16, 3'); a('s_and_b32 s17, s19, 7'); a('s_add_u32 s16, s16, s17')
    a('s_lshr_b32 s17, s18, 2'); a('s_lshl_b32 s17, s17, 2'); a('s_lshr_b32 s19, s19, 3'); a('s_add_u32 s17, s17, s19')
    a('v_and_b32 v1, 63, v0'); a('v_lshrrev_b32 v7, 6, v0')
    a('v_readfirstlane_b32 s20, v7')
    a('v_lshlrev_b32 v2, 4, v1')
    a('v_and_b32 v5, 15, v1'); a('v_lshrrev_b32 v6, 4, v1')
    a('s_waitcnt lgkmcnt(0)')
    srd(a, 8, 8, WS_SIZE)
    srd(a, 4, 4, 2048*1152)
    big = a.newlabel('kd_n4')
    a('s_cmp_ge_u32 s17, 4'); a(f's_cbranch_scc1 {big}')
    for NFR in (5, 4):
        if NFR == 4: a.label(big)
        S = Stream(a)
        if NFR == 5:
            a('s_mul_i32 s21, s17, 80'); a('s_mul_i32 s22, s17, 5120')
        else:
            a('s_sub_u32 s23, s17, 4'); a('s_lshl_b32 s21, s23, 6'); a('s_add_u32 s21, s21, 320'); a('s_lshl_b32 s22, s23, 12'); a(f's_add_u32 s22, s22, {20*1024}')
        a(f's_mul_i32 s23, s20, {18*36864}'); a('s_add_u32 s22, s22, s23'); a(f's_add_u32 s22, s22, {WS_WOT}')
        a(f's_mul_i32 s24, s16, {72*4096}'); a(f's_mul_i32 s23, s20, {18*4096}'); a('s_add_u32 s24, s24, s23'); a(f's_add_u32 s24, s24, {WS_ZG}')
        FR = 8
        def wreg(k, ii): return FR + (k % PD)*36 + ii*4
        def zreg(k, jj): return FR + (k % PD)*36 + 20 + jj*4
        def loads(k):
            ops = []
            for jj in range(4):
                ops.append(([f's_add_u32 s25, s24, {k*4096}'] if jj == 0 else [], f'buffer_load_dwordx4 v[{zreg(k,jj)}:{zreg(k,jj)+3}], v2, s[8:11], s25 offen' + (f' offset:{jj*1024}' if jj else ''), ('k', k)))
            for ii in range(NFR):
                pre = [f's_add_u32 s26, s22, {k*36864}'] if ii == 0 else ([f's_add_u32 s26, s26, 4096'] if ii == 4 else [])
                ops.append((pre, f'buffer_load_dwordx4 v[{wreg(k,ii)}:{wreg(k,ii)+3}], v2, s[8:11], s26 offen' + (f' offset:{(ii%4)*1024}' if ii % 4 else ''), ('k', k)))
            return ops
        def issue(op):
            for l in op[0]: a(l)
            S.vmem(op[1], op[2])
        for k in range(PD-1):
            for op in loads(k): issue(op)
        XO = 80*1024
        a('s_lshr_b32 s27, s16, 1'); a(f's_mul_i32 s27, s27, {576*256}'); a('s_lshl_b32 s28, s21, 8'); a('s_add_u32 s27, s27, s28')
        a(f's_mul_i32 s28, s20, {NFR*1024}'); a('s_add_u32 s27, s27, s28'); a(f's_add_u32 s27, s27, {WS_X1T}')
        a(f's_add_u32 m0, s28, {XO}')
        a('s_nop 0')
        for b in range(NFR):
            if b == 4:
                a(f's_add_u32 m0, s28, {XO+4096}'); a('s_add_u32 s27, s27, 4096')
            S.vmem(f'buffer_load_dwordx4 v2, s[8:11], s27 offen' + (f' offset:{(b%4)*1024}' if b % 4 else '') + ' lds', 'X')
        GB = 188
        a('v_lshlrev_b32 v3, 4, v6'); a('s_lshl_b32 s29, s21, 2'); a(f's_add_u32 s29, s29, {WS_MOD + 5*576*4}')
        for ii in range(NFR):
            S.vmem(f'buffer_load_dwordx4 v[{GB+4*ii}:{GB+4*ii+3}], v3, s[8:11], s29 offen' + (f' offset:{ii*64}' if ii else ''), 'G')
        for i in range(NFR*16): a(f'v_accvgpr_write_b32 a{i}, 0')
        stamp(a, 0)
        for k in range(18):
            q = loads(k + PD - 1) if k + PD - 1 < 18 else []
            S.wait_vm(('k', k))
            n = 0
            for ii in range(NFR):
                for jj in range(4):
                    ac = (ii*4 + jj)*4
                    a(f'v_mfma_f32_16x16x32_bf16 a[{ac}:{ac+3}], v[{wreg(k,ii)}:{wreg(k,ii)+3}], v[{zreg(k,jj)}:{zreg(k,jj)+3}], a[{ac}:{ac+3}]')
                    n += 1
                    if q and n % 2 == 0: issue(q.pop(0))
            while q: issue(q.pop(0))
        stamp(a, 1)
        a(f's_mul_i32 s30, s20, {4*NFR*1024}'); a('v_add_u32 v4, s30, v2')
        R0 = 8
        for jj in range(4):
            for ii in range(NFR):
                ac = (ii*4 + jj)*4; r = R0 + (jj*NFR + ii)*4
                for k in range(4): a(f'v_accvgpr_read_b32 v{r+k}, a{ac+k}')
                S.ds(f'ds_write_b128 v4, v[{r}:{r+3}] offset:{(jj*NFR+ii)*1024}', 'rw')
        S.wait_lg_all(); S.wait_vm_all()
        a('s_barrier')
        a(f's_mul_i32 s30, s20, {NFR*1024}'); a('v_add_u32 v4, s30, v2')
        a(f'v_add_u32 v3, {2*4*NFR*1024}, v4')
        for src in range(4):
            for ii in range(NFR):
                r = R0 + (src*NFR + ii)*4
                S.ds(f'ds_read_b128 v[{r}:{r+3}], v{4 if src < 2 else 3} offset:{((src % 2)*4*NFR + ii)*1024}', ('rr', ii))
        a('v_lshrrev_b32 v100, 2, v5'); a('v_and_b32 v101, 3, v1')
        a('v_lshrrev_b32 v102, 1, v6'); a('v_lshl_add_u32 v102, v102, 2, v100'); a('v_lshlrev_b32 v102, 1, v102')
        a('s_and_b32 s31, s16, 1'); a('s_lshl_b32 s31, s31, 3'); a('s_lshl_b32 s32, s20, 1'); a('s_add_u32 s31, s31, s32')
        a('v_lshrrev_b32 v103, 1, v101'); a('v_add_u32 v103, s31, v103'); a('v_xor_b32 v103, v103, v102')
        a('v_lshl_add_u32 v104, v6, 2, v100'); a('v_lshlrev_b32 v104, 8, v104'); a('v_lshl_add_u32 v104, v103, 4, v104')
        a('v_and_b32 v103, 1, v101'); a('v_lshl_add_u32 v104, v103, 3, v104'); a(f'v_add_u32 v104, {XO}, v104')
        XV = 106
        for ii in range(NFR):
            S.ds(f'ds_read_b64_tr_b16 v[{XV+2*ii}:{XV+2*ii+1}], v104 offset:{ii*4096}', ('xr', ii))
        a('s_lshl_b32 s31, s16, 6'); a('s_lshl_b32 s32, s20, 4'); a('s_add_u32 s31, s31, s32'); a('s_mul_i32 s31, s31, 1152'); a('s_lshl_b32 s32, s21, 1'); a('s_add_u32 s31, s31, s32')
        a('v_mul_u32_u24 v105, 1152, v5'); a('v_lshl_add_u32 v105, v6, 3, v105')
        for ii in range(NFR):
            S.wait_lg(('rr', ii), ('xr', ii)) if ii == 0 else None
            if ii == 0: S.wait_lg_all()
            r0 = R0 + ii*4
            for p in range(2):
                a(f'v_pk_add_f32 v[{r0+2*p}:{r0+2*p+1}], v[{r0+2*p}:{r0+2*p+1}], v[{r0+4*NFR+2*p}:{r0+4*NFR+2*p+1}]')
                a(f'v_pk_add_f32 v[{r0+8*NFR+2*p}:{r0+8*NFR+2*p+1}], v[{r0+8*NFR+2*p}:{r0+8*NFR+2*p+1}], v[{r0+12*NFR+2*p}:{r0+12*NFR+2*p+1}]')
            for p in range(2):
                a(f'v_pk_add_f32 v[{r0+2*p}:{r0+2*p+1}], v[{r0+2*p}:{r0+2*p+1}], v[{r0+8*NFR+2*p}:{r0+8*NFR+2*p+1}]')
            x = 120
            a(f'v_lshlrev_b32 v{x}, 16, v{XV+2*ii}'); a(f'v_and_b32 v{x+1}, 0xffff0000, v{XV+2*ii}'); a(f'v_lshlrev_b32 v{x+2}, 16, v{XV+2*ii+1}'); a(f'v_and_b32 v{x+3}, 0xffff0000, v{XV+2*ii+1}')
            for p in range(2):
                a(f'v_pk_fma_f32 v[{r0+2*p}:{r0+2*p+1}], v[{r0+2*p}:{r0+2*p+1}], v[{GB+4*ii+2*p}:{GB+4*ii+2*p+1}], v[{x+2*p}:{x+2*p+1}]')
            o = 124 + 2*(ii % 2)
            a(f'v_cvt_pk_bf16_f32 v{o}, v{r0}, v{r0+1}'); a(f'v_cvt_pk_bf16_f32 v{o+1}, v{r0+2}, v{r0+3}')
            a(f'buffer_store_dwordx2 v[{o}:{o+1}], v105, s[4:7], s31 offen' + (f' offset:{ii*32}' if ii else ''))
        if NFR == 5: a(f's_branch {name}_exit')
    kexit(a, name, kidx)
    return dict(name=name, grid=256, block=256, lds=KD_LDS, vgpr=212+80, accum=212, sgpr=102)
```

```python
from common import *
from gen_kb import GC0, GC1, red_q, kb_tile

OPT = dict(sc1=' sc1', gelu_at=2, st='main', g_stat=25, g_p3=26, g_w=31)
STAMPSETS = dict(
    main=dict(B0=0, Bmid=1, Bend=2, Cstart=3, Cend=4, Dpoll=5, Dend=6, Zpub=7),
    cd=dict(Cend=0, Cepi=1, Cst=2, Dld=3, Dbar=4, Dpoll=5, Dk0=6, Dend=7),
    bc=dict(Bend=0, Bpoll=1, Bz1=2, Bst=3, Cld=4, Zpub=5, Cpoll=6, Cstart=7),
    b=dict(B0=0, Bmid=1, Bgelu=2, Bg21=3, Bg25=4, Bg29=5, Bend=6, Bk4=7),
)
def stp(a, nm):
    m = STAMPSETS[OPT['st']]
    if nm in m: stamp(a, m[nm])
CG_STAT, CG_W, CG_Z, CG_G = 0, 1, 2, 3

def cnt_addr(a, dst, group, idx):
    a(f's_lshl_b32 s{dst}, s{idx}, 8'); a(f's_add_u32 s{dst}, s{dst}, {WS_CNT + group*4096}')

def signal(a, group, idx):
    lab = a.newlabel('kg_sig')
    a('s_cmp_lg_u32 s20, 0'); a(f's_cbranch_scc1 {lab}')
    cnt_addr(a, 90, group, idx)
    a('v_mov_b32 v250, 1'); a('v_mov_b32 v251, 0')
    a('s_mov_b64 exec, 1')
    a('buffer_atomic_add v250, v251, s[8:11], s90 offen sc1')
    a('s_mov_b64 exec, -1')
    a.label(lab)

def poll(a, items):
    lab = a.newlabel('kg_polled')
    a('s_cmp_lg_u32 s20, 0'); a(f's_cbranch_scc1 {lab}')
    a('v_mov_b32 v251, 0')
    for group, idx in items:
        lp = a.newlabel('kg_poll'); ok = a.newlabel('kg_ok')
        cnt_addr(a, 90, group, idx)
        a('s_mov_b32 s91, 0x100000')
        a.label(lp)
        a('buffer_load_dword v250, v251, s[8:11], s90 offen sc1')
        a('s_waitcnt vmcnt(0)')
        a('v_readfirstlane_b32 s92, v250')
        a('s_sub_u32 s91, s91, 1'); a('s_cmp_eq_u32 s91, 0'); a(f's_cbranch_scc1 {ok}')
        a('s_cmp_ge_u32 s92, 16'); a(f's_cbranch_scc1 {ok}')
        a('s_sleep 1')
        a(f's_branch {lp}')
        a.label(ok)
    a.label(lab)
    a('s_barrier')

Z1 = 200

def phase_B(a, name):
    S = Stream(a)
    NX, NW = 4, 5
    XSLOT, WSLOT = 16384, 18432
    XR = 0; WR = NX*XSLOT; SC = WR + NW*WSLOT
    NST = 18
    a('s_mul_i32 s21, s20, 5'); a('s_lshl_b32 s22, s20, 2'); a('s_add_u32 s22, s22, 2')
    a('s_movk_i32 s23, 3072')
    a('s_cmp_lt_u32 s20, 2'); a('s_cselect_b32 s21, s21, s22')
    a('s_cselect_b32 s23, 4096, s23')
    a('s_cselect_b64 s[24:25], -1, 1')
    a('s_lshl_b32 s21, s21, 10')
    a(f's_mul_i32 s26, s17, {36*9216}'); a(f's_add_u32 s26, s26, {WS_W1T}'); a('s_add_u32 s26, s26, s21')
    a('s_add_u32 s27, s21, s23')
    a(f's_mul_i32 s28, s16, {576*256}'); a(f's_add_u32 s28, s28, {WS_X1T}'); a('s_lshl_b32 s29, s20, 12'); a('s_add_u32 s28, s28, s29')
    a('s_mul_i32 s33, s17, 576')
    a('s_cmp_lt_u32 s20, 2'); a(f's_cselect_b32 s34, {2304*4}, 0'); a('s_add_u32 s33, s33, s34')
    a('s_and_b32 s34, s20, 1'); a(f's_mul_i32 s34, s34, {WS_BIAS - WS_CS}'); a('s_add_u32 s33, s33, s34'); a(f's_add_u32 s33, s33, {WS_CS}')
    a('s_mul_i32 s34, s20, 576')
    a('s_waitcnt lgkmcnt(0)')
    srd(a, 8, 8, WS_SIZE)
    def lds_base(addr):
        if addr < 0x10000: return 'v3', addr
        if addr < 0x20000: return 'v4', addr - 0x10000
        return 'v5', addr - 0x20000
    def dma_W(n):
        slot = WR + (n % NW)*WSLOT
        ops = []
        ops.append(([f's_add_u32 m0, s21, {slot}', f's_add_u32 s30, s26, {n*WSLOT}'], 'buffer_load_dwordx4 v3, s[8:11], s30 offen lds', []))
        for k in range(1, 4):
            ops.append(([], f'buffer_load_dwordx4 v3, s[8:11], s30 offen offset:{k*1024} lds', []))
        ops.append(([f's_add_u32 m0, s27, {slot}', 's_add_u32 s31, s30, s23', 's_mov_b64 exec, s[24:25]'], 'buffer_load_dwordx4 v3, s[8:11], s31 offen lds', ['s_mov_b64 exec, -1']))
        return [(p, t, q, ('W', n)) for p, t, q in ops]
    def dma_X(m):
        slot = XR + (m % NX)*XSLOT
        ops = [([f's_add_u32 m0, s29, {slot}', f's_add_u32 s32, s28, {m*XSLOT}'], 'buffer_load_dwordx4 v3, s[8:11], s32 offen lds', [])]
        for k in range(1, 4):
            ops.append(([], f'buffer_load_dwordx4 v3, s[8:11], s32 offen offset:{k*1024} lds', []))
        return [(p, t, q, ('X', m)) for p, t, q in ops]
    def issue(op):
        p, t, q, tag = op
        for l in p: a(l)
        S.vmem(t, tag)
        for l in q: a(l)
    for op in dma_X(0): issue(op)
    for op in dma_W(0): issue(op)
    a(f's_add_u32 m0, s34, {SC}')
    a('s_mov_b32 exec_hi, 0xf')
    S.vmem('buffer_load_dwordx4 v3, s[8:11], s33 offen lds', 'CB')
    a('s_mov_b64 exec, -1')
    for op in dma_X(1): issue(op)
    for op in dma_W(1): issue(op)
    late = []
    for n in range(2, NW-1):
        if n < NX-1: late += dma_X(n)
        late += dma_W(n)
    srd(a, 4, 4, 2048*4096)
    a('v_lshrrev_b32 v10, 2, v6'); a('v_and_b32 v11, 3, v1')
    a('v_and_b32 v12, 1, v7'); a('v_lshl_add_u32 v12, v12, 2, v10'); a('v_lshlrev_b32 v12, 1, v12')
    a('v_lshl_add_u32 v13, v7, 3, v10'); a('v_lshlrev_b32 v13, 8, v13')
    a('v_and_b32 v14, 1, v11'); a('v_lshl_add_u32 v13, v14, 3, v13')
    a('v_lshrrev_b32 v14, 1, v11'); a('v_lshl_add_u32 v14, v2, 2, v14')
    a('v_xor_b32 v15, v14, v12'); a('v_lshl_add_u32 v8, v15, 4, v13')
    a('v_add_u32 v14, 2, v14'); a('v_xor_b32 v15, v14, v12'); a('v_lshl_add_u32 v9, v15, 4, v13')
    P3R = 168
    a('v_lshrrev_b32 v16, 2, v1'); a('v_lshlrev_b32 v16, 12, v16'); a('v_and_b32 v17, 3, v1'); a('v_lshl_add_u32 v16, v17, 4, v16')
    a('s_lshl_b32 s38, s16, 19'); a('s_lshl_b32 s39, s20, 17'); a('s_add_u32 s38, s38, s39'); a('s_lshl_b32 s40, s17, 8'); a('s_add_u32 s38, s38, s40')
    a('s_lshl_b32 s39, s16, 2'); a('s_add_u32 s39, s39, s20'); a('s_lshl_b32 s39, s39, 17'); a('s_lshl_b32 s40, s17, 13'); a('s_add_u32 s39, s39, s40'); a(f's_add_u32 s39, s39, {WS_WSP}')
    a('s_lshl_b32 s54, s20, 13')
    a('v_lshlrev_b32 v17, 6, v6'); a('v_lshl_add_u32 v17, v7, 4, v17'); a('v_add_u32 v17, s54, v17')
    XF, WF, ACC1 = 0, 144, 180
    ACC2 = 96
    ONE, GR, ONES = 20, 28, 36
    for i in range(4): a(f'v_mov_b32 v{ONES+i}, 0x3f803f80')
    for i in range(16): a(f'v_mov_b32 v{ONE+i}, 0')
    for i in range(72): a(f'v_mov_b32 v{ACC2+i}, 0')
    for i in range(72): a(f'v_accvgpr_write_b32 a{ACC1+i}, 0')
    def rdW(g, ii):
        n, u = g >> 1, g & 1
        b, o = lds_base(WR + (n % NW)*WSLOT + u*9216 + ii*1024)
        S.ds(f'ds_read_b128 a[{WF+4*ii}:{WF+4*ii+3}], {b} offset:{o}', ('w', g, ii))
    def rdX(Sx):
        m, u = Sx >> 1, Sx & 1
        base = XR + (m % NX)*XSLOT + u*8192
        ops = []
        for jj in range(2):
            for h in range(2):
                r = XF + (Sx*2 + jj)*4 + 2*h
                ops.append((f'ds_read_b64_tr_b16 a[{r}:{r+1}], v{8+jj} offset:{base + h*1024}', ('x', Sx)))
        return ops
    RM = 40; CBR = 44; T = 60; SA, QA = 76, 80
    a(f'v_mov_b32 v84, {H(GC0)}'); a(f'v_mov_b32 v85, {H(GC1)}')
    a('s_mov_b32 s46, 1.0'); a('s_mov_b32 s47, 1.0')
    for i in range(8): a(f'v_mov_b32 v{SA+i}, 0')
    a(f'v_lshlrev_b32 v18, 4, v7'); a(f'v_add_u32 v18, {SC - 0x20000}, v18'); a('v_add_u32 v18, 0x20000, v18')
    S.wait_vm(('X', 0), ('W', 0), 'CB')
    a('s_barrier')
    stp(a, 'B0')
    for t, tag in rdX(0): S.ds(t, tag)
    for ii in range(9): rdW(0, ii)
    def cb_reads(ii, off):
        cb = CBR + 8*(ii % 2)
        S.ds(f'ds_read_b128 v[{cb}:{cb+3}], v18 offset:{off + ii*64}', ('cb', off, ii))
        S.ds(f'ds_read_b128 v[{cb+4}:{cb+7}], v18 offset:{off + 576 + ii*64}', ('cb', off, ii))
    def fold_ops(src, jj, cb, t):
        rm = RM + 2*jj
        ops = []
        for p in range(2):
            ops.append(f'v_pk_fma_f32 v[{t+2*p}:{t+2*p+1}], v[{rm}:{rm+1}], v[{cb+2*p}:{cb+2*p+1}], v[{cb+4+2*p}:{cb+5+2*p}] op_sel:[1,0,0] op_sel_hi:[1,1,1] neg_lo:[1,0,0] neg_hi:[1,0,0]')
        for p in range(2):
            ops.append(f'v_pk_fma_f32 v[{src+2*p}:{src+2*p+1}], v[{src+2*p}:{src+2*p+1}], v[{rm}:{rm+1}], v[{t+2*p}:{t+2*p+1}] op_sel:[0,0,0] op_sel_hi:[1,0,1]')
        return ops
    def gelu_ops(src, t):
        ops = []
        for p in range(2): ops.append(f'v_pk_mul_f32 v[{t+2*p}:{t+2*p+1}], v[{src+2*p}:{src+2*p+1}], v[{src+2*p}:{src+2*p+1}]')
        for p in range(2): ops.append(f'v_pk_fma_f32 v[{t+2*p}:{t+2*p+1}], v[{t+2*p}:{t+2*p+1}], v[84:85], v[84:85] op_sel:[0,1,0] op_sel_hi:[1,1,0]')
        for p in range(2): ops.append(f'v_pk_mul_f32 v[{t+2*p}:{t+2*p+1}], v[{t+2*p}:{t+2*p+1}], v[{src+2*p}:{src+2*p+1}]')
        for k in range(4): ops.append(f'v_exp_f32 v{t+k}, v{t+k}')
        for p in range(2): ops.append(f'v_pk_add_f32 v[{t+2*p}:{t+2*p+1}], v[{t+2*p}:{t+2*p+1}], s[46:47]')
        for k in range(4): ops.append(f'v_rcp_f32 v{t+k}, v{t+k}')
        for p in range(2): ops.append(f'v_pk_mul_f32 v[{src+2*p}:{src+2*p+1}], v[{src+2*p}:{src+2*p+1}], v[{t+2*p}:{t+2*p+1}]')
        return ops
    def mid_section():
        a('s_barrier')
        a('s_nop 7')
        a('v_and_b32 v60, 3, v6'); a('v_lshrrev_b32 v61, 2, v6')
        a('v_cmp_eq_u32 s[40:41], 1, v60'); a('v_cmp_eq_u32 s[42:43], 2, v60'); a('v_cmp_eq_u32 s[44:45], 3, v60'); a('v_cmp_eq_u32 s[48:49], v61, v7')
        for jj in range(2):
            g_ = GR + 4*jj
            a(f'v_cndmask_b32 v{g_}, v{g_}, v{g_+1}, s[40:41]'); a(f'v_cndmask_b32 v{g_}, v{g_}, v{g_+2}, s[42:43]'); a(f'v_cndmask_b32 v{g_}, v{g_}, v{g_+3}, s[44:45]')
            a(f'v_cndmask_b32 v{g_}, 0, v{g_}, s[48:49]')
        cb_reads(0, 0)
        for jj in range(2): red_q(a, GR + 4*jj, 62 + jj)
        for jj in range(2):
            sm, sq = ONE + 4*jj, GR + 4*jj
            a(f'v_mul_f32 v{sm}, {H(1/576)}, v{sm}'); a(f'v_mul_f32 v{sq}, {H(1/576)}, v{sq}')
            a(f'v_fma_f32 v{sq}, -v{sm}, v{sm}, v{sq}'); a(f'v_max_f32 v{sq}, 0, v{sq}'); a(f'v_add_f32 v{sq}, {H(1e-5)}, v{sq}')
            a(f'v_rsq_f32 v{RM+2*jj}, v{sq}'); a(f'v_mul_f32 v{RM+2*jj+1}, v{sm}, v{RM+2*jj}')
        for ii in range(9):
            if ii + 1 < 9: cb_reads(ii+1, 0)
            if ii < 8:
                jj_, u_ = ii >> 2, ii & 3
                a(f's_add_u32 m0, s54, {ii*1024}'); a(f's_add_u32 s55, s38, {jj_*16*4096 + u_*64}')
                S.vmem('buffer_load_dwordx4 v16, s[4:7], s55 offen lds', 'P3')
            S.wait_lg(('cb', 0, ii))
            cb = CBR + 8*(ii % 2)
            chains = []
            for jj in range(2):
                src = ACC2 + (ii*2 + jj)*4; t = T + 8*jj
                ops = fold_ops(src, jj, cb, t) + gelu_ops(src, t + 4)
                for p in range(2):
                    ops.append(f'v_pk_add_f32 v[{SA+2*jj}:{SA+2*jj+1}], v[{SA+2*jj}:{SA+2*jj+1}], v[{src+2*p}:{src+2*p+1}]')
                    ops.append(f'v_pk_fma_f32 v[{QA+2*jj}:{QA+2*jj+1}], v[{src+2*p}:{src+2*p+1}], v[{src+2*p}:{src+2*p+1}], v[{QA+2*jj}:{QA+2*jj+1}]')
                chains.append(ops)
            for x, y in zip(*chains): a(x); a(y)
        for jj in range(2):
            a(f'v_add_f32 v{SA+2*jj}, v{SA+2*jj}, v{SA+2*jj+1}'); a(f'v_add_f32 v{QA+2*jj}, v{QA+2*jj}, v{QA+2*jj+1}')
        for r in (SA, SA+2, QA, QA+2): red_q(a, r, T)
        a(f'v_mov_b32 v{SA+1}, v{QA}'); a(f'v_mov_b32 v{SA+3}, v{QA+2}')
        a('v_lshl_add_u32 v60, v2, 5, v6'); a('v_lshlrev_b32 v60, 7, v60')
        a(f's_lshl_b32 s48, s16, 14'); a('s_lshl_b32 s49, s17, 3'); a('s_add_u32 s48, s48, s49'); a(f's_add_u32 s48, s48, {WS_Z2ST}')
        a('s_mov_b64 exec, 0xffff')
        S.vmem(f'buffer_store_dwordx2 v[{SA}:{SA+1}], v60, s[8:11], s48 offen sc1', 'pub')
        S.vmem(f'buffer_store_dwordx2 v[{SA+2}:{SA+3}], v60, s[8:11], s48 offen offset:2048 sc1', 'pub')
        a('s_mov_b64 exec, -1')
    NG = 36
    vm_q = list(late)
    sig_stat = sig_w = False
    for g in range(NG):
        n, u = g >> 1, g & 1
        pass2 = g >= 18
        Sx = g if not pass2 else g - 18
        if g == 18:
            stp(a, 'Bmid')
            mid_section()
            stp(a, 'Bgelu')
        if u == 1 and n + 1 < NST:
            tags = [('W', n+1)]
            if n + 1 < 9: tags.append(('X', n+1))
            s1 = pass2 and not sig_stat and g >= OPT['g_stat']
            s2_ = pass2 and not sig_w and g >= OPT['g_w']
            if s1: tags.append('pub')
            if s2_: tags.append(('P3s', 7))
            S.wait_vm(*tags)
            if g == 33:
                poll(a, [(CG_STAT, 16)])
                a('v_lshl_add_u32 v60, v2, 5, v6'); a('v_lshlrev_b32 v60, 7, v60'); a('v_lshl_add_u32 v60, v7, 5, v60')
                a(f's_lshl_b32 s48, s16, 14'); a(f's_add_u32 s48, s48, {WS_Z2ST}')
                for jj in range(2):
                    S.vmem(f'buffer_load_dwordx4 v[{20+8*jj}:{23+8*jj}], v60, s[8:11], s48 offen offset:{jj*2048} sc1', 'part')
                    S.vmem(f'buffer_load_dwordx4 v[{24+8*jj}:{27+8*jj}], v60, s[8:11], s48 offen offset:{jj*2048+16} sc1', 'part')
            else:
                a('s_barrier')
            if s1: signal(a, CG_STAT, 16); sig_stat = True
            if s2_: signal(a, CG_W, 16); sig_w = True
            if n + NW - 1 < NST: vm_q += dma_W(n + NW - 1)
            if n + NX - 1 < 9: vm_q += dma_X(n + NX - 1)
        lds_q = rdX(Sx + 1) if (not pass2 and Sx + 1 < 18) else []
        st = []
        if not pass2:
            S.wait_lg(('x', Sx))
            xf = [XF + (Sx*2 + jj)*4 for jj in range(2)]
            st = [f'v_mfma_f32_16x16x32_bf16 v[{ONE+4*jj}:{ONE+4*jj+3}], v[{ONES}:{ONES+3}], a[{xf[jj]}:{xf[jj]+3}], v[{ONE+4*jj}:{ONE+4*jj+3}]' for jj in range(2)]
            st += [f'v_mfma_f32_16x16x32_bf16 v[{GR+4*jj}:{GR+4*jj+3}], a[{xf[jj]}:{xf[jj]+3}], a[{xf[jj]}:{xf[jj]+3}], v[{GR+4*jj}:{GR+4*jj+3}]' for jj in range(2)]
        if g in (4, 21, 25, 29): stp(a, {4: 'Bk4', 21: 'Bg21', 25: 'Bg25', 29: 'Bg29'}[g])
        p3_q = []
        if g in (OPT['g_p3'], OPT['g_p3'] + 1):
            h = g - OPT['g_p3']
            if h == 0: S.wait_vm('P3')
            for i in range(4*h, 4*h + 4):
                S.ds(f'ds_read_b128 v[{P3R+4*i}:{P3R+4*i+3}], v17 offset:{i*1024}', ('p3r', i))
        if g in (OPT['g_p3'] + 1, OPT['g_p3'] + 2):
            p3_q = list(range(4*(g - OPT['g_p3'] - 1), 4*(g - OPT['g_p3'] - 1) + 4))
        for ii in range(9):
            S.wait_lg(('w', g, ii))
            for jj in range(2):
                xr = XF + (Sx*2 + jj)*4
                if not pass2: acc = f'v[{ACC2+(ii*2+jj)*4}:{ACC2+(ii*2+jj)*4+3}]'
                else: acc = f'a[{ACC1+(ii*2+jj)*4}:{ACC1+(ii*2+jj)*4+3}]'
                a(f'v_mfma_f32_16x16x32_bf16 {acc}, a[{WF+4*ii}:{WF+4*ii+3}], a[{xr}:{xr+3}], {acc}')
                if jj == 0:
                    if lds_q:
                        t, tag = lds_q.pop(0); S.ds(t, tag)
                    if vm_q: issue(vm_q.pop(0))
            if g + 1 < NG: rdW(g + 1, ii)
            if st and ii % 2 == 1: a(st.pop(0))
            if p3_q and ii % 2 == 1:
                i = p3_q.pop(0)
                S.wait_lg(('p3r', i))
                a(f's_add_u32 s40, s39, {(i & 3)*2048 + (i >> 2)*1024}')
                S.vmem(f'buffer_store_dwordx4 v[{P3R+4*i}:{P3R+4*i+3}], v3, s[8:11], s40 offen sc1', ('P3s', i))
        assert not lds_q and not st
    assert not vm_q and sig_stat and sig_w
    stp(a, 'Bend')
    a('s_barrier')
    RM2 = 168
    S.wait_vm('part')
    for jj in range(2):
        b = 20 + 8*jj
        a(f'v_pk_add_f32 v[{b}:{b+1}], v[{b}:{b+1}], v[{b+2}:{b+3}]'); a(f'v_pk_add_f32 v[{b+4}:{b+5}], v[{b+4}:{b+5}], v[{b+6}:{b+7}]')
        a(f'v_pk_add_f32 v[{b}:{b+1}], v[{b}:{b+1}], v[{b+4}:{b+5}]')
    RS = 304
    a(f'v_mul_u32_u24 v60, {RS}, v6'); a('v_lshl_add_u32 v60, v7, 3, v60'); a(f'v_mul_u32_u24 v61, {32*RS}, v2'); a(f'v_add_u32 v61, {WR}, v61'); a('v_add_u32 v60, v60, v61')
    for r in (20, 21, 28, 29): red_q(a, r, T + 4)
    a('v_lshrrev_b32 v62, 2, v6'); a('v_lshl_add_u32 v62, v7, 3, v62'); a(f'v_mul_u32_u24 v62, {RS}, v62'); a('v_and_b32 v63, 3, v1'); a('v_lshl_add_u32 v62, v63, 3, v62'); a('v_add_u32 v62, v62, v61')
    for jj in range(2):
        b = 20 + 8*jj
        a(f'v_mul_f32 v{b}, {H(1/2304)}, v{b}'); a(f'v_mul_f32 v{b+1}, {H(1/2304)}, v{b+1}')
        a(f'v_fma_f32 v{b+1}, -v{b}, v{b}, v{b+1}'); a(f'v_max_f32 v{b+1}, 0, v{b+1}'); a(f'v_add_f32 v{b+1}, {H(1e-5)}, v{b+1}')
        a(f'v_rsq_f32 v{RM2+2*jj}, v{b+1}'); a(f'v_mul_f32 v{RM2+2*jj+1}, v{b}, v{RM2+2*jj}')
    stp(a, 'Bpoll')
    for ii in range(9):
        for jj in range(2):
            src = ACC2 + (ii*2 + jj)*4; rm = RM2 + 2*jj
            for p in range(2):
                a(f'v_pk_fma_f32 v[{src+2*p}:{src+2*p+1}], v[{src+2*p}:{src+2*p+1}], v[{rm}:{rm+1}], v[{rm}:{rm+1}] op_sel:[0,0,1] op_sel_hi:[1,0,1] neg_lo:[0,0,1] neg_hi:[0,0,1]')
        for jj in range(2):
            src = ACC2 + (ii*2 + jj)*4
            a(f'v_cvt_pk_bf16_f32 v{src}, v{src}, v{src+1}'); a(f'v_cvt_pk_bf16_f32 v{src+1}, v{src+2}, v{src+3}')
        for jj in range(2):
            src = ACC2 + (ii*2 + jj)*4
            S.ds(f'ds_write_b64 v60, v[{src}:{src+1}] offset:{jj*16*RS + ii*32}', 'tw')
    S.wait_lg_all()
    for ii in range(9):
        r = ACC2 + 4*ii
        S.ds(f'ds_read_b64_tr_b16 v[{r}:{r+1}], v62 offset:{ii*32}', ('tr', ii))
        S.ds(f'ds_read_b64_tr_b16 v[{r+2}:{r+3}], v62 offset:{4*RS + ii*32}', ('tr', ii))
    a('s_lshl_b32 s50, s17, 6'); a('s_lshl_b32 s51, s16, 2'); a('s_add_u32 s50, s50, s51'); a('s_add_u32 s50, s50, s20')
    a('s_mul_i32 s50, s50, 9216'); a(f's_add_u32 s50, s50, {WS_Z2T}')
    for ii in range(9):
        r = ACC2 + 4*ii
        S.wait_lg(('tr', ii))
        a(f's_add_u32 s51, s50, {ii*1024}')
        a(f'buffer_store_dwordx4 v[{r}:{r+3}], v3, s[8:11], s51 offen sc1')
    stp(a, 'Bst')
    cb_reads(0, 1152)
    for ii in range(9):
        if ii + 1 < 9: cb_reads(ii+1, 1152)
        for jj in range(2):
            for k in range(4): a(f'v_accvgpr_read_b32 v{88+4*jj+k}, a{ACC1+(ii*2+jj)*4+k}')
        S.wait_lg(('cb', 1152, ii))
        cb = CBR + 8*(ii % 2)
        for x, y in zip(fold_ops(88, 0, cb, T), fold_ops(92, 1, cb, T+8)):
            a(x); a(y)
        z = Z1 + 4*ii
        a(f'v_cvt_pk_bf16_f32 v{z}, v88, v89'); a(f'v_cvt_pk_bf16_f32 v{z+1}, v90, v91')
        a(f'v_cvt_pk_bf16_f32 v{z+2}, v92, v93'); a(f'v_cvt_pk_bf16_f32 v{z+3}, v94, v95')
    stp(a, 'Bz1')

def phase_C(a, name):
    S = Stream(a)
    SLOT, NSL, NST = 36864, 4, 16
    sc = OPT['sc1']
    a(f's_load_dwordx2 s[4:5], s[0:1], {KA["b_sp"]}')
    a(f's_mul_i32 s34, s17, {64*9216}'); a(f's_add_u32 s34, s34, {WS_Z2T}')
    a('s_mul_i32 s31, s20, 9216')
    a('s_add_u32 s24, s34, s31')
    a('s_lshl_b32 s25, s16, 2'); a('s_add_u32 s25, s25, s20'); a('s_lshl_b32 s25, s25, 17'); a(f's_add_u32 s25, s25, {WS_WSP}')
    IF = 12; ACC = 48; BS = 156; T = 158; JF = 0
    def lds_base(addr):
        if addr < 0x10000: return 'v3', addr
        if addr < 0x20000: return 'v4', addr - 0x10000
        return 'v5', addr - 0x20000
    def jreg(n, u, jj): return JF + (((n % 4)*4 + u)*2 + jj)*4
    def zloads(n):
        slot = (n % NSL)*SLOT; tag = ('D', n); d = []
        for p in range(9):
            pre = [f's_add_u32 m0, s31, {slot+p*1024}', f's_add_u32 s26, s24, {n*4*9216 + p*1024}'] if p % 4 == 0 else []
            o = f' offset:{(p%4)*1024}' if p % 4 else ''
            d.append((pre, f'buffer_load_dwordx4 v3, s[8:11], s26 offen{o}{sc} lds', [], tag))
        return d
    def wloads(n):
        tag = ('D', n); j = []
        for x in range(8):
            pre = [f's_add_u32 s27, s25, {n*8192 + x*1024}'] if x % 4 == 0 else []
            r = jreg(n, x//2, x % 2)
            o = f' offset:{(x%4)*1024}' if x % 4 else ''
            j.append((pre, f'buffer_load_dwordx4 a[{r}:{r+3}], v3, s[8:11], s27 offen{o}{sc}', [], tag))
        return j
    def loads(n):
        d = zloads(n); j = wloads(n); out = []
        while d or j:
            if d: out.append(d.pop(0))
            if j: out.append(j.pop(0))
        return out
    def issue(op):
        p, t, q, tag = op
        for l in p: a(l)
        S.vmem(t, tag)
        for l in q: a(l)
    a('v_lshlrev_b32 v8, 1, v6')
    a('s_waitcnt vmcnt(0) lgkmcnt(0)')
    a('s_barrier')
    stp(a, 'Zpub')
    signal(a, CG_Z, 17)
    srd(a, 4, 4, 2048*2)
    a('s_lshl_b32 s43, s16, 8'); a('s_lshl_b32 s44, s20, 6'); a('s_add_u32 s43, s43, s44')
    poll(a, [(CG_W, 16)])
    for n in range(2):
        for op in wloads(n): issue(op)
    S.vmem(f'buffer_load_ushort v{BS}, v8, s[4:7], s43 offen', 'BS')
    S.vmem(f'buffer_load_ushort v{BS+1}, v8, s[4:7], s43 offen offset:32', 'BS')
    for i in range(72): a(f'v_mov_b32 v{ACC+i}, 0')
    stp(a, 'Cld')
    poll(a, [(CG_Z, 17)])
    stp(a, 'Cpoll')
    for op in zloads(0): issue(op)
    for op in zloads(1): issue(op)
    late = loads(2)
    def rdI(g, ii):
        n, u = g >> 2, g & 3
        b, o = lds_base((n % NSL)*SLOT + u*9216 + ii*1024)
        S.ds(f'ds_read_b128 v[{IF+4*ii}:{IF+4*ii+3}], {b} offset:{o}', ('i', g, ii))
    S.wait_vm(('D', 0))
    a('s_barrier')
    stp(a, 'Cstart')
    for ii in range(9): rdI(0, ii)
    a(f's_mov_b32 s53, {H(GC1)}'); a(f'v_mov_b32 v{T+20}, {H(GC0)}')
    def gelu_list():
        ops = []
        for k0 in range(0, 36, 2):
            regs = [Z1 + k0, Z1 + k0 + 1]
            x = [T + 0, T + 1, T + 2, T + 3]; t = [T + 4, T + 5, T + 6, T + 7]
            if (k0//2) % 2: x = [v + 8 for v in x]; t = [v + 8 for v in t]
            ops += [f'v_lshlrev_b32 v{x[0]}, 16, v{regs[0]}', f'v_and_b32 v{x[1]}, 0xffff0000, v{regs[0]}', f'v_lshlrev_b32 v{x[2]}, 16, v{regs[1]}', f'v_and_b32 v{x[3]}, 0xffff0000, v{regs[1]}']
            ops += [f'v_mul_f32 v{t[i]}, v{x[i]}, v{x[i]}' for i in range(4)]
            ops += [f'v_fma_f32 v{t[i]}, v{t[i]}, s53, v{T+20}' for i in range(4)]
            ops += [f'v_mul_f32 v{t[i]}, v{t[i]}, v{x[i]}' for i in range(4)]
            ops += [f'v_exp_f32 v{t[i]}, v{t[i]}' for i in range(4)]
            ops += [f'v_add_f32 v{t[i]}, 1.0, v{t[i]}' for i in range(4)]
            ops += [f'v_rcp_f32 v{t[i]}, v{t[i]}' for i in range(4)]
            ops += [f'v_mul_f32 v{x[i]}, v{x[i]}, v{t[i]}' for i in range(4)]
            ops += [f'v_cvt_pk_bf16_f32 v{regs[0]}, v{x[0]}, v{x[1]}', f'v_cvt_pk_bf16_f32 v{regs[1]}, v{x[2]}, v{x[3]}']
        return ops
    NG = 4*NST
    vm_q = list(late); valu_q = []
    def fill(k, kmax):
        while valu_q and k < kmax:
            it = valu_q[0]
            c = 2 if ('v_exp' in it or 'v_rcp' in it) else 1
            if k + c > kmax and k > 0: break
            valu_q.pop(0); a(it); k += c
        return k
    for g in range(NG):
        n, u = g >> 2, g & 3
        if u == 3 and n + 1 < NST:
            S.wait_vm(('D', n+1))
            a('s_barrier')
            if n + NSL - 1 < NST: vm_q += loads(n + NSL - 1)
        if g == OPT['gelu_at']: valu_q += gelu_list()
        for ii in range(9):
            if ii % 3 == 0: S.wait_lg(('i', g, min(ii + 2, 8)))
            for jj in range(2):
                ac = ACC + (ii*2+jj)*4; r = jreg(n, u, jj)
                a(f'v_mfma_f32_16x16x32_bf16 v[{ac}:{ac+3}], v[{IF+ii*4}:{IF+ii*4+3}], a[{r}:{r+3}], v[{ac}:{ac+3}]')
                if jj == 0:
                    k = 0
                    if vm_q and (ii % 2 == 0 or len(vm_q) > 17):
                        issue(vm_q.pop(0)); k += 2
                    fill(k, 2)
            if g + 1 < NG: rdI(g + 1, ii)
            if (ii + 1) % 3 != 0: fill(0, 1)
    assert not vm_q and not valu_q
    stp(a, 'Cend')
    a(f'v_lshlrev_b32 v{BS}, 16, v{BS}'); a(f'v_lshlrev_b32 v{BS+1}, 16, v{BS+1}')
    a('s_lshl_b32 s40, s16, 1'); a('s_lshr_b32 s41, s20, 1'); a('s_add_u32 s40, s40, s41'); a(f's_mul_i32 s40, s40, {72*4096}')
    a('s_and_b32 s41, s20, 1'); a('s_lshl_b32 s41, s41, 11'); a('s_add_u32 s40, s40, s41'); a(f's_add_u32 s40, s40, {WS_ZG}')
    a('s_mul_i32 s41, s17, 9')
    a('s_lshr_b32 s42, s41, 1'); a('s_lshl_b32 s42, s42, 12'); a('s_add_u32 s40, s40, s42')
    def epi(ii):
        for jj in range(2):
            z = Z1 + 4*ii + 2*jj; x = T + 4*jj
            a(f'v_lshlrev_b32 v{x}, 16, v{z}'); a(f'v_and_b32 v{x+1}, 0xffff0000, v{z}'); a(f'v_lshlrev_b32 v{x+2}, 16, v{z+1}'); a(f'v_and_b32 v{x+3}, 0xffff0000, v{z+1}')
        for jj in range(2):
            ac = ACC + (ii*2+jj)*4
            for p in range(2):
                a(f'v_pk_add_f32 v[{ac+2*p}:{ac+2*p+1}], v[{ac+2*p}:{ac+2*p+1}], v[{BS}:{BS+1}] op_sel:[0,{jj}] op_sel_hi:[1,{jj}]')
        for jj in range(2):
            ac = ACC + (ii*2+jj)*4; x = T + 4*jj
            for p in range(2):
                a(f'v_pk_mul_f32 v[{ac+2*p}:{ac+2*p+1}], v[{ac+2*p}:{ac+2*p+1}], v[{x+2*p}:{x+2*p+1}]')
        for jj in range(2):
            ac = ACC + (ii*2+jj)*4
            d = IF + jj*18 + 2*ii
            a(f'v_cvt_pk_bf16_f32 v{d}, v{ac}, v{ac+1}'); a(f'v_cvt_pk_bf16_f32 v{d+1}, v{ac+2}, v{ac+3}')
    a('v_lshlrev_b32 v9, 3, v1')
    odd = a.newlabel('kg_odd'); join = a.newlabel('kg_join')
    a('s_bitcmp1_b32 s17, 0'); a(f's_cbranch_scc1 {odd}')
    for par in range(2):
        if par == 1: a.label(odd)
        ii = 0
        while ii < 9:
            G = par + ii
            srel = G >> 1
            pair = (G % 2 == 0 and ii + 1 < 9)
            epi(ii)
            if pair: epi(ii + 1)
            for jj in range(2):
                d = IF + jj*18 + 2*ii
                if pair:
                    a(f's_add_u32 s43, s40, {srel*4096 + jj*1024}')
                    a(f'buffer_store_dwordx4 v[{d}:{d+3}], v3, s[8:11], s43 offen sc1')
                else:
                    a(f's_add_u32 s43, s40, {srel*4096 + jj*1024 + (G % 2)*512}')
                    a(f'buffer_store_dwordx2 v[{d}:{d+1}], v9, s[8:11], s43 offen sc1')
            ii += 2 if pair else 1
        if par == 0: a(f's_branch {join}')
    a.label(join)
    stp(a, 'Cst')

def phase_D(a, name):
    PD = 5
    sc = OPT['sc1']
    a('s_lshl_b32 s56, s16, 1'); a('s_lshr_b32 s57, s17, 3'); a('s_add_u32 s56, s56, s57'); a('s_and_b32 s57, s17, 7')
    a(f's_load_dwordx2 s[4:5], s[0:1], {KA["out"]}')
    big = a.newlabel('kg_n4')
    first = True
    a('s_cmp_ge_u32 s57, 4'); a(f's_cbranch_scc1 {big}')
    for NFR in (5, 4):
        if NFR == 4: a.label(big)
        S = Stream(a)
        if NFR == 5:
            a('s_mul_i32 s21, s57, 80'); a('s_mul_i32 s22, s57, 5120')
        else:
            a('s_sub_u32 s23, s57, 4'); a('s_lshl_b32 s21, s23, 6'); a('s_add_u32 s21, s21, 320'); a('s_lshl_b32 s22, s23, 12'); a(f's_add_u32 s22, s22, {20*1024}')
        a(f's_mul_i32 s23, s20, {18*36864}'); a('s_add_u32 s22, s22, s23'); a(f's_add_u32 s22, s22, {WS_WOT}')
        a(f's_mul_i32 s24, s56, {72*4096}'); a(f's_mul_i32 s23, s20, {18*4096}'); a('s_add_u32 s24, s24, s23'); a(f's_add_u32 s24, s24, {WS_ZG}')
        a('v_lshlrev_b32 v11, 3, v1')
        FR = 48
        def wreg(k, ii): return FR + (k % PD)*36 + ii*4
        def zreg(k, jj): return FR + (k % PD)*36 + 20 + jj*4
        def zl(k):
            ops = []
            for jj in range(4):
                pre = [f's_add_u32 s25, s24, {k*4096}'] if jj == 0 else []
                r = zreg(k, jj)
                if k % 9 == 4:
                    ops.append((pre, f'buffer_load_dwordx2 v[{r}:{r+1}], v11, s[8:11], s25 offen' + (f' offset:{jj*1024}' if jj else '') + sc, ('k', k)))
                    ops.append(([], f'buffer_load_dwordx2 v[{r+2}:{r+3}], v11, s[8:11], s25 offen offset:{jj*1024 + 512}' + sc, ('k', k)))
                else:
                    ops.append((pre, f'buffer_load_dwordx4 v[{r}:{r+3}], v3, s[8:11], s25 offen' + (f' offset:{jj*1024}' if jj else '') + sc, ('k', k)))
            return ops
        def wl(k):
            ops = []
            for ii in range(NFR):
                pre = [f's_add_u32 s26, s22, {k*36864}'] if ii == 0 else ([f's_add_u32 s26, s26, 4096'] if ii == 4 else [])
                ops.append((pre, f'buffer_load_dwordx4 v[{wreg(k,ii)}:{wreg(k,ii)+3}], v3, s[8:11], s26 offen' + (f' offset:{(ii%4)*1024}' if ii % 4 else ''), ('k', k)))
            return ops
        def issue(op):
            for l in op[0]: a(l)
            S.vmem(op[1], op[2])
        for k in range(PD-1):
            for op in wl(k): issue(op)
        XO = 80*1024
        a('s_lshr_b32 s27, s56, 1'); a(f's_mul_i32 s27, s27, {576*256}'); a('s_lshl_b32 s28, s21, 8'); a('s_add_u32 s27, s27, s28')
        a(f's_mul_i32 s28, s20, {NFR*1024}'); a('s_add_u32 s27, s27, s28'); a(f's_add_u32 s27, s27, {WS_X1T}')
        a(f's_add_u32 m0, s28, {XO}')
        a('s_nop 0')
        for b in range(NFR):
            if b == 4:
                a(f's_add_u32 m0, s28, {XO+4096}'); a('s_add_u32 s27, s27, 4096')
            S.vmem(f'buffer_load_dwordx4 v3, s[8:11], s27 offen' + (f' offset:{(b%4)*1024}' if b % 4 else '') + ' lds', 'X')
        GB = 228
        a('v_lshlrev_b32 v8, 4, v7'); a('s_lshl_b32 s29, s21, 2'); a(f's_add_u32 s29, s29, {WS_MOD + 5*576*4}')
        for ii in range(NFR):
            S.vmem(f'buffer_load_dwordx4 v[{GB+4*ii}:{GB+4*ii+3}], v8, s[8:11], s29 offen' + (f' offset:{ii*64}' if ii else ''), 'G')
        stp(a, 'Dld')
        a(f's_waitcnt vmcnt({len(S.vm)})')
        a('s_barrier')
        stp(a, 'Dbar')
        signal(a, CG_G, 16)
        for i in range(NFR*16): a(f'v_accvgpr_write_b32 a{i}, 0')
        poll(a, [(CG_G, 16)])
        stp(a, 'Dpoll')
        for op in zl(0): issue(op)
        for op in zl(1): issue(op)
        late = zl(2) + zl(3)
        for k in range(18):
            q = late if k == 0 else []
            if k + PD - 1 < 18:
                q = q + zl(k + PD - 1) + wl(k + PD - 1)
            S.wait_vm(('k', k))
            if k == 0: stp(a, 'Dk0')
            n = 0
            for ii in range(NFR):
                for jj in range(4):
                    ac = (ii*4 + jj)*4
                    a(f'v_mfma_f32_16x16x32_bf16 a[{ac}:{ac+3}], v[{wreg(k,ii)}:{wreg(k,ii)+3}], v[{zreg(k,jj)}:{zreg(k,jj)+3}], a[{ac}:{ac+3}]')
                    n += 1
                    if q and (n % 2 == 0 or len(q) > 10): issue(q.pop(0))
            while q: issue(q.pop(0))
        stp(a, 'Dend')
        a(f's_mul_i32 s30, s20, {4*NFR*1024}'); a('v_add_u32 v9, s30, v3')
        R0 = 48
        for jj in range(4):
            for ii in range(NFR):
                ac = (ii*4 + jj)*4; r = R0 + (jj*NFR + ii)*4
                for k in range(4): a(f'v_accvgpr_read_b32 v{r+k}, a{ac+k}')
                S.ds(f'ds_write_b128 v9, v[{r}:{r+3}] offset:{(jj*NFR+ii)*1024}', 'rw')
        S.wait_lg_all(); S.wait_vm_all()
        a('s_barrier')
        a(f's_mul_i32 s30, s20, {NFR*1024}'); a('v_add_u32 v9, s30, v3')
        a(f'v_add_u32 v10, {2*4*NFR*1024}, v9')
        for src in range(4):
            for ii in range(NFR):
                r = R0 + (src*NFR + ii)*4
                S.ds(f'ds_read_b128 v[{r}:{r+3}], v{9 if src < 2 else 10} offset:{((src % 2)*4*NFR + ii)*1024}', ('rr', ii))
        X0 = 140
        a(f'v_lshrrev_b32 v{X0}, 2, v6'); a(f'v_and_b32 v{X0+1}, 3, v1')
        a(f'v_lshrrev_b32 v{X0+2}, 1, v7'); a(f'v_lshl_add_u32 v{X0+2}, v{X0+2}, 2, v{X0}'); a(f'v_lshlrev_b32 v{X0+2}, 1, v{X0+2}')
        a('s_and_b32 s31, s56, 1'); a('s_lshl_b32 s31, s31, 3'); a('s_lshl_b32 s32, s20, 1'); a('s_add_u32 s31, s31, s32')
        a(f'v_lshrrev_b32 v{X0+3}, 1, v{X0+1}'); a(f'v_add_u32 v{X0+3}, s31, v{X0+3}'); a(f'v_xor_b32 v{X0+3}, v{X0+3}, v{X0+2}')
        a(f'v_lshl_add_u32 v{X0+4}, v7, 2, v{X0}'); a(f'v_lshlrev_b32 v{X0+4}, 8, v{X0+4}'); a(f'v_lshl_add_u32 v{X0+4}, v{X0+3}, 4, v{X0+4}')
        a(f'v_and_b32 v{X0+3}, 1, v{X0+1}'); a(f'v_lshl_add_u32 v{X0+4}, v{X0+3}, 3, v{X0+4}'); a(f'v_add_u32 v{X0+4}, {XO}, v{X0+4}')
        XV = 146
        for ii in range(NFR):
            S.ds(f'ds_read_b64_tr_b16 v[{XV+2*ii}:{XV+2*ii+1}], v{X0+4} offset:{ii*4096}', ('xr', ii))
        srd(a, 4, 4, 2048*1152)
        a('s_lshl_b32 s31, s56, 6'); a('s_lshl_b32 s32, s20, 4'); a('s_add_u32 s31, s31, s32'); a('s_mul_i32 s31, s31, 1152'); a('s_lshl_b32 s32, s21, 1'); a('s_add_u32 s31, s31, s32')
        a(f'v_mul_u32_u24 v{X0+5}, 1152, v6'); a(f'v_lshl_add_u32 v{X0+5}, v7, 3, v{X0+5}')
        S.wait_lg_all()
        for ii in range(NFR):
            r0 = R0 + ii*4
            for p in range(2):
                a(f'v_pk_add_f32 v[{r0+2*p}:{r0+2*p+1}], v[{r0+2*p}:{r0+2*p+1}], v[{r0+4*NFR+2*p}:{r0+4*NFR+2*p+1}]')
                a(f'v_pk_add_f32 v[{r0+8*NFR+2*p}:{r0+8*NFR+2*p+1}], v[{r0+8*NFR+2*p}:{r0+8*NFR+2*p+1}], v[{r0+12*NFR+2*p}:{r0+12*NFR+2*p+1}]')
            for p in range(2):
                a(f'v_pk_add_f32 v[{r0+2*p}:{r0+2*p+1}], v[{r0+2*p}:{r0+2*p+1}], v[{r0+8*NFR+2*p}:{r0+8*NFR+2*p+1}]')
            x = 160
            a(f'v_lshlrev_b32 v{x}, 16, v{XV+2*ii}'); a(f'v_and_b32 v{x+1}, 0xffff0000, v{XV+2*ii}'); a(f'v_lshlrev_b32 v{x+2}, 16, v{XV+2*ii+1}'); a(f'v_and_b32 v{x+3}, 0xffff0000, v{XV+2*ii+1}')
            for p in range(2):
                a(f'v_pk_fma_f32 v[{r0+2*p}:{r0+2*p+1}], v[{r0+2*p}:{r0+2*p+1}], v[{GB+4*ii+2*p}:{GB+4*ii+2*p+1}], v[{x+2*p}:{x+2*p+1}]')
            o = 164 + 2*(ii % 2)
            a(f'v_cvt_pk_bf16_f32 v{o}, v{r0}, v{r0+1}'); a(f'v_cvt_pk_bf16_f32 v{o+1}, v{r0+2}, v{r0+3}')
            a(f'buffer_store_dwordx2 v[{o}:{o+1}], v{X0+5}, s[4:7], s31 offen' + (f' offset:{ii*32}' if ii else ''))
        if NFR == 5: a(f's_branch {name}_exit')

def gen_kg(a, kidx=2):
    name = 'kg_kernel'
    kstart(a, name, 252, nloads=3)
    a('s_cmp_ge_u32 s2, 256'); a(f's_cbranch_scc1 {name}_exit')
    a(f's_load_dwordx2 s[8:9], s[0:1], {KA["ws"]}')
    a(f's_load_dwordx2 s[4:5], s[0:1], {KA["w_sp"]}')
    kb_tile(a, 16, 17, 18, 19)
    a('v_and_b32 v1, 63, v0'); a('v_lshrrev_b32 v2, 6, v0')
    a('v_readfirstlane_b32 s20, v2')
    a('v_lshlrev_b32 v3, 4, v1')
    a('v_add_u32 v4, 0x10000, v3'); a('v_add_u32 v5, 0x20000, v3')
    a('v_and_b32 v6, 15, v1'); a('v_lshrrev_b32 v7, 4, v1')
    phase_B(a, name)
    phase_C(a, name)
    phase_D(a, name)
    kexit(a, name, kidx)
    return dict(name=name, grid=256, block=256, lds=160000, vgpr=256+256, accum=256, sgpr=102)
```

```python
from asmgen import *
from layout import *
import struct
def f32bits(x):
    return struct.unpack('<I', struct.pack('<f', x))[0]
def H(x): return hex(f32bits(x))
LOG2E = 1.4426950408889634
PROF = [False]
STAMPREG = [82, 84, 86, 88, 70, 72, 74, 76]

def srd(a, d, p, nbytes):
    if d != p: a(f's_mov_b32 s{d}, s{p}')
    a(f's_and_b32 s{d+1}, s{p+1}, 0xffff')
    a(f's_mov_b32 s{d+2}, {nbytes}')
    a(f's_mov_b32 s{d+3}, 0x20000')

CODEPF = dict(on=True, nwg=64, nxt={})
def kstart(a, name, pfreg, nloads=1):
    kernel_begin(a, name)
    if PROF[0]:
        a('s_memrealtime s[96:97]')
        for i in range(8): a(f's_mov_b32 s{STAMPREG[i]}, 0')
    if CODEPF['on']:
        lab = a.newlabel(name + '_pf')
        a(f's_cmp_ge_u32 s2, {CODEPF["nwg"]}'); a(f's_cbranch_scc1 {lab}')
        a('s_getpc_b64 s[4:5]')
        a.label(f'{name}_pc')
        a(f's_mov_b32 s6, {name}_codeend-{name}_pc-4')
        a('v_lshlrev_b32 v1, 7, v0')
        for k in range(nloads):
            if k: a(f'v_add_u32 v1, 0x8000, v1')
            a('v_min_u32 v2, s6, v1')
            a(f'global_load_dword v{pfreg + (k if nloads < 3 else 0)}, v2, s[4:5]')
        a.label(lab)

def stamp(a, i):
    if PROF[0]:
        a(f's_memrealtime s[{STAMPREG[i]}:{STAMPREG[i]+1}]')

def kexit(a, name, kidx):
    a.label(f'{name}_exit')
    if PROF[0]:
        a('s_memrealtime s[98:99]')
        a(f's_load_dwordx2 s[92:93], s[0:1], {KA["ws"]}')
        a('s_getreg_b32 s100, hwreg(HW_REG_XCC_ID)')
        a('s_waitcnt lgkmcnt(0)')
        a('s_and_b32 s93, s93, 0xffff'); a(f's_mov_b32 s94, {WS_SIZE}'); a('s_mov_b32 s95, 0x20000')
        a('s_mov_b64 exec, -1')
        a('v_mov_b32 v4, s96'); a('v_mov_b32 v5, s98'); a('v_mov_b32 v6, s100'); a('v_mov_b32 v7, 0')
        a('v_mov_b32 v8, s82'); a('v_mov_b32 v9, s84'); a('v_mov_b32 v10, s86'); a('v_mov_b32 v11, s88')
        a('s_lshl_b32 s101, s2, 6'); a(f's_add_u32 s101, s101, {WS_PROF + kidx*0x20000}')
        a('v_mov_b32 v1, 0')
        a('v_cmp_eq_u32 vcc, 0, v0')
        a('s_and_saveexec_b64 s[96:97], vcc')
        a(f's_cbranch_execz {name}_end')
        a('buffer_store_dwordx4 v[4:7], v1, s[92:95], s101 offen')
        a('buffer_store_dwordx4 v[8:11], v1, s[92:95], s101 offen offset:16')
        a('v_mov_b32 v8, s70'); a('v_mov_b32 v9, s72'); a('v_mov_b32 v10, s74'); a('v_mov_b32 v11, s76')
        a('s_nop 1')
        a('buffer_store_dwordx4 v[8:11], v1, s[92:95], s101 offen offset:32')
        a.label(f'{name}_end')
    a('s_endpgm')
    a.label(f'{name}_codeend')

def dispatch(a, name, jobs):
    base = 0
    for job in jobs:
        lab, cnt = job[0], job[1]
        first = job[2] if len(job) > 2 else 0
        a(f's_sub_u32 s3, s2, {base - first}' if base >= first else f's_add_u32 s3, s2, {first - base}')
        a(f's_cmp_lt_u32 s2, {base+cnt}')
        a(f's_cbranch_scc1 {lab}')
        base += cnt
    a(f's_branch {name}_exit')
    return base

class Stream:
    def __init__(self, a):
        self.a = a; self.lg = []; self.vm = []
    def ds(self, text, tag=None):
        self.a(text); self.lg.append(tag)
    def vmem(self, text, tag=None):
        self.a(text); self.vm.append(tag)
    def _wait(self, lst, tags, cap, name):
        idx = -1
        for i, t in enumerate(lst):
            if t in tags: idx = i
        if idx < 0: return lst
        n = len(lst) - 1 - idx
        n = min(n, cap)
        self.a(f's_waitcnt {name}({n})')
        return lst[len(lst)-n:] if n else []
    def wait_lg(self, *tags): self.lg = self._wait(self.lg, set(tags), 15, 'lgkmcnt')
    def wait_vm(self, *tags): self.vm = self._wait(self.vm, set(tags), 63, 'vmcnt')
    def wait_lg_all(self):
        if self.lg: self.a('s_waitcnt lgkmcnt(0)'); self.lg = []
    def wait_vm_all(self):
        if self.vm: self.a('s_waitcnt vmcnt(0)'); self.vm = []

def xcd_tile(a, si, sj, t1, t2):
    a(f's_and_b32 s{t1}, s2, 7'); a(f's_lshr_b32 s{t2}, s2, 3')
    a(f's_and_b32 s{si}, s{t1}, 3'); a(f's_lshl_b32 s{si}, s{si}, 2'); a(f's_and_b32 s{sj}, s{t2}, 3'); a(f's_add_u32 s{si}, s{si}, s{sj}')
    a(f's_lshr_b32 s{sj}, s{t1}, 2'); a(f's_lshl_b32 s{sj}, s{sj}, 3'); a(f's_lshr_b32 s{t2}, s{t2}, 2'); a(f's_add_u32 s{sj}, s{sj}, s{t2}')
```

```python
from common import *

RSL = 1168

def tile_load(a, srd_s, soff, rowstride, V=8):
    a('v_lshrrev_b32 v1, 3, v0')
    a('v_and_b32 v2, 7, v0')
    a(f'v_mul_u32_u24 v3, {rowstride}, v1')
    a('v_lshl_add_u32 v3, v2, 4, v3')
    for i in range(9):
        o = f' offset:{i*128}' if i else ''
        a(f'buffer_load_dwordx4 v[{V+4*i}:{V+4*i+3}], v3, s[{srd_s}:{srd_s+3}], {soff} offen{o}')

def tile_to_lds(a, V=8):
    a(f'v_mul_u32_u24 v3, {RSL}, v1')
    a('v_lshl_add_u32 v3, v2, 4, v3')
    for i in range(9):
        a(f'ds_write_b128 v3, v[{V+4*i}:{V+4*i+3}] offset:{i*128}')

def tr_addr(a, rowmul, second, dst=8, wave_bytes=32, m_bytes=128):
    a('v_and_b32 v4, 63, v0')
    a('v_lshrrev_b32 v5, 6, v0')
    a('v_lshrrev_b32 v6, 4, v4')
    a('v_bfe_u32 v7, v4, 2, 2')
    a(f'v_lshl_add_u32 v7, v6, {rowmul}, v7')
    a(f'v_mul_u32_u24 v7, {RSL}, v7')
    a('v_and_b32 v50, 3, v4')
    a('v_lshl_add_u32 v7, v50, 3, v7')
    if wave_bytes == 32: a('v_lshl_add_u32 v7, v5, 5, v7')
    else:
        a(f'v_mul_u32_u24 v50, {wave_bytes}, v5'); a('v_add_u32 v7, v7, v50')
    for m in range(9):
        a(f'ds_read_b64_tr_b16 v[{dst+4*m}:{dst+1+4*m}], v7 offset:{m*m_bytes}')
        a(f'ds_read_b64_tr_b16 v[{dst+2+4*m}:{dst+3+4*m}], v7 offset:{m*m_bytes+second*RSL}')

def job_T(a, ex):
    a.c('---- job T: transpose x + LN1 stats')
    a('s_setprio 2')
    a(f's_load_dwordx2 s[4:5], s[0:1], {KA["x"]}')
    a(f's_load_dwordx2 s[8:9], s[0:1], {KA["ws"]}')
    a('s_waitcnt lgkmcnt(0)')
    srd(a, 4, 4, 2048*1152)
    srd(a, 8, 8, WS_SIZE)
    a(f's_mul_i32 s12, s3, {32*1152}')
    tile_load(a, 4, 's12', 1152)
    a('s_lshl_b32 s13, s3, 8'); a(f's_add_u32 s13, s13, {WS_CNT}')
    a('v_mov_b32 v45, 0')
    a('buffer_store_dword v45, v45, s[8:11], s13 offen sc1')
    a('v_mov_b32 v44, 0x3f803f80')
    a('v_mov_b32 v45, 0'); a('v_mov_b32 v46, 0')
    stamp(a, 0)
    a('s_waitcnt vmcnt(0)')
    stamp(a, 1)
    tile_to_lds(a)
    a('s_waitcnt lgkmcnt(0)')
    a('s_barrier')
    tr_addr(a, 3, 4, dst=52)
    for i in range(36):
        a(f'v_dot2c_f32_bf16 v45, v{8+i}, v44')
        a(f'v_dot2c_f32_bf16 v46, v{8+i}, v{8+i}')
    stamp(a, 2)
    a('v_and_b32 v50, 15, v4')
    a('v_lshl_add_u32 v50, v5, 4, v50')
    a('v_lshlrev_b32 v50, 6, v50')
    a('v_lshl_add_u32 v50, v6, 4, v50')
    a(f's_mul_i32 s13, s3, {576*64}')
    a(f's_add_u32 s13, s13, {WS_XT}')
    for m in range(9):
        a(f's_waitcnt lgkmcnt({min(15, 2*(8-m))})')
        a(f'buffer_store_dwordx4 v[{52+4*m}:{55+4*m}], v50, s[8:11], s13 offen sc1')
        if m < 8: a(f's_add_u32 s13, s13, {64*64}')
    for m in ('quad_perm:[1,0,3,2]', 'quad_perm:[2,3,0,1]', 'row_half_mirror'):
        a(f'v_add_f32_dpp v45, v45, v45 {m} row_mask:0xf bank_mask:0xf')
        a(f'v_add_f32_dpp v46, v46, v46 {m} row_mask:0xf bank_mask:0xf')
    a(f'v_mul_f32 v45, {H(1.0/576)}, v45')
    a(f'v_mul_f32 v46, {H(1.0/576)}, v46')
    a('v_fma_f32 v46, -v45, v45, v46')
    a('v_max_f32 v46, 0, v46')
    a(f'v_add_f32 v46, {H(1e-5)}, v46')
    a('v_rsq_f32 v48, v46')
    a('v_mul_f32 v49, v45, v48')
    a('s_lshl_b32 s13, s3, 7')
    a(f's_add_u32 s14, s13, {WS_MU}')
    a(f's_add_u32 s13, s13, {WS_RHO}')
    a('v_lshlrev_b32 v3, 2, v1')
    a('v_cmp_eq_u32 vcc, 0, v2')
    a('s_and_saveexec_b64 s[16:17], vcc')
    a('buffer_store_dword v48, v3, s[8:11], s13 offen sc1')
    a('buffer_store_dword v49, v3, s[8:11], s14 offen sc1')
    a(f's_branch {ex}')

def job_P2(a, ex):
    a.c('---- job P2: w_out re-layout')
    a(f's_load_dwordx2 s[4:5], s[0:1], {KA["w_out"]}')
    a(f's_load_dwordx2 s[8:9], s[0:1], {KA["ws"]}')
    a('s_waitcnt lgkmcnt(0)')
    srd(a, 4, 4, 2304*1152)
    srd(a, 8, 8, WS_SIZE)
    a(f's_mul_i32 s12, s3, {32*1152}')
    tile_load(a, 4, 's12', 1152)
    a('s_waitcnt vmcnt(0)')
    tile_to_lds(a)
    a('s_waitcnt lgkmcnt(0)')
    a('s_barrier')
    tr_addr(a, 2, 16, wave_bytes=288, m_bytes=32)
    a('v_lshlrev_b32 v50, 4, v4')
    a('v_readfirstlane_b32 s14, v5')
    a('s_mul_i32 s16, s3, 36864'); a('s_mul_i32 s17, s14, 9216'); a('s_add_u32 s16, s16, s17'); a(f's_add_u32 s16, s16, {WS_WOT}')
    a('s_add_u32 s17, s16, 4096'); a('s_add_u32 s18, s16, 8192')
    for m in range(9):
        a(f's_waitcnt lgkmcnt({min(15, 2*(8-m))})')
        a(f'buffer_store_dwordx4 v[{8+4*m}:{11+4*m}], v50, s[8:11], s{16 + m//4} offen' + (f' offset:{(m % 4)*1024}' if m % 4 else '') + ' sc1')
    a(f's_branch {ex}')

def job_P3(a, ex):
    a.c('---- job P3: w_sp re-layout')
    a(f's_load_dwordx2 s[4:5], s[0:1], {KA["w_sp"]}')
    a(f's_load_dwordx2 s[8:9], s[0:1], {KA["ws"]}')
    a('v_and_b32 v4, 63, v0'); a('v_lshrrev_b32 v5, 6, v0')
    a('v_readfirstlane_b32 s14, v5')
    a('v_lshrrev_b32 v6, 2, v4'); a('v_lshlrev_b32 v6, 12, v6'); a('v_and_b32 v7, 3, v4'); a('v_lshl_add_u32 v6, v7, 4, v6')
    a('s_lshl_b32 s15, s3, 2'); a('s_add_u32 s15, s15, s14')
    a('s_lshr_b32 s16, s15, 3')
    a('s_and_b32 s17, s15, 7')
    a('s_lshl_b32 s18, s16, 16'); a('s_lshl_b32 s19, s17, 9'); a('s_add_u32 s18, s18, s19')
    a('s_lshl_b32 s21, s14, 13')
    a('s_waitcnt lgkmcnt(0)')
    srd(a, 4, 4, 2048*4096)
    srd(a, 8, 8, WS_SIZE)
    for i in range(8):
        a(f's_add_u32 m0, s21, {i*1024}'); a(f's_add_u32 s22, s18, {i*64}')
        a('buffer_load_dwordx4 v6, s[4:7], s22 offen lds')
    a('s_lshr_b32 s19, s16, 1'); a('s_lshl_b32 s19, s19, 17')
    a('s_and_b32 s20, s16, 1'); a('s_lshl_b32 s20, s20, 10'); a('s_add_u32 s19, s19, s20')
    a('s_lshl_b32 s20, s17, 14'); a('s_add_u32 s19, s19, s20'); a(f's_add_u32 s19, s19, {WS_WSP}')
    a('v_and_b32 v7, 15, v4'); a('v_lshlrev_b32 v7, 6, v7'); a('v_lshrrev_b32 v8, 4, v4'); a('v_lshl_add_u32 v7, v8, 4, v7'); a('v_add_u32 v7, s21, v7')
    a('v_lshlrev_b32 v6, 4, v4')
    a('s_waitcnt vmcnt(0)')
    for i in range(8):
        a(f'ds_read_b128 v[{8+4*i}:{11+4*i}], v7 offset:{i*1024}')
    for i in range(8):
        a(f's_waitcnt lgkmcnt({7-i})')
        a(f'buffer_store_dwordx4 v[{8+4*i}:{11+4*i}], v6, s[8:11], s19 offen sc1')
        if i < 7: a('s_add_u32 s19, s19, 2048')
    a(f's_branch {ex}')

def job_mod(a, ex):
    a.c('---- job mod')
    a('s_setprio 2')
    a('s_and_b32 s13, s3, 7'); a('s_lshl_b32 s13, s13, 1'); a('s_bfe_u32 s14, s3, 0x10003'); a('s_or_b32 s13, s13, s14'); a('s_andn2_b32 s15, s3, 15'); a('s_or_b32 s13, s13, s15')
    a('s_cmp_lt_u32 s3, 96'); a('s_cselect_b32 s3, s13, s3')
    a(f's_load_dwordx4 s[4:7], s[0:1], {KA["c"]}')
    a(f's_load_dwordx2 s[16:17], s[0:1], {KA["ws"]}')
    a('v_and_b32 v1, 3, v0')
    a('v_lshrrev_b32 v2, 2, v0')
    a('v_mul_u32_u24 v3, 6912, v2')
    a('v_lshl_add_u32 v3, v1, 4, v3')
    a('s_lshl_b32 s13, s3, 6')
    a('v_lshlrev_b32 v4, 1, v2')
    a('s_waitcnt lgkmcnt(0)')
    srd(a, 8, 6, 576*3456*2)
    srd(a, 4, 4, 576*2)
    srd(a, 16, 16, WS_SIZE)
    for i in range(9):
        a(f'buffer_load_ushort v{48+i}, v4, s[4:7], 0 offen offset:{i*128}')
    for i in range(9):
        a(f'buffer_load_dwordx4 v[{8+4*i}:{11+4*i}], v3, s[8:11], s13 offen')
        if i < 8: a(f's_add_u32 s13, s13, {64*6912}')
    for i in range(8): a(f'v_mov_b32 v{70+i}, 0')
    stamp(a, 0)
    a('s_waitcnt vmcnt(9)')
    stamp(a, 1)
    for i in range(9):
        r = 48+i
        a(f'v_lshlrev_b32 v{r}, 16, v{r}')
        a(f'v_mul_f32 v68, {H(-LOG2E)}, v{r}')
        a('v_exp_f32 v68, v68')
        a('v_add_f32 v68, 1.0, v68')
        a('v_rcp_f32 v68, v68')
        a(f'v_mul_f32 v{r}, v{r}, v68')
        a(f'v_cvt_pk_bf16_f32 v{58+i}, 0, v{r}')
        a(f'v_lshrrev_b32 v{r}, 16, v{58+i}')
    for i in range(9):
        a(f's_waitcnt vmcnt({8-i})')
        for k in range(4):
            a(f'v_dot2c_f32_bf16 v{70+2*k}, v{8+4*i+k}, v{48+i}')
            a(f'v_dot2c_f32_bf16 v{71+2*k}, v{8+4*i+k}, v{58+i}')
    stamp(a, 2)
    for k in range(8):
        a(f'v_add_f32_dpp v{70+k}, v{70+k}, v{70+k} row_ror:4 row_mask:0xf bank_mask:0xf')
    for k in range(8):
        a(f'v_add_f32_dpp v{70+k}, v{70+k}, v{70+k} row_ror:8 row_mask:0xf bank_mask:0xf')
    a('v_lshrrev_b32 v5, 4, v0'); a('v_lshlrev_b32 v5, 7, v5'); a('v_lshl_add_u32 v5, v1, 5, v5')
    a('v_bfe_u32 v6, v0, 2, 2')
    a('v_cmp_eq_u32 vcc, 0, v6')
    a('s_and_saveexec_b64 s[14:15], vcc')
    a('ds_write_b128 v5, v[70:73]')
    a('ds_write_b128 v5, v[74:77] offset:16')
    a('s_mov_b64 exec, s[14:15]')
    a('s_waitcnt lgkmcnt(0)')
    a('s_barrier')
    a('v_cmp_gt_u32 vcc, 32, v0')
    a('s_and_saveexec_b64 s[14:15], vcc')
    a(f's_cbranch_execz {ex}')
    a('v_lshlrev_b32 v5, 2, v0')
    for i in range(16):
        a(f'ds_read_b32 v{8+i}, v5 offset:{i*128}')
    a('s_waitcnt lgkmcnt(0)')
    for st in (8, 4, 2, 1):
        for i in range(st):
            a(f'v_add_f32 v{8+i}, v{8+i}, v{8+i+st}')
    a('v_cvt_pk_bf16_f32 v6, v8, v8')
    a('v_and_b32 v6, 0xffff0000, v6')
    a('s_lshl_b32 s13, s3, 7')
    a(f's_add_u32 s13, s13, {WS_MOD}')
    a('buffer_store_dword v6, v5, s[16:19], s13 offen sc1')
    a(f's_branch {ex}')

MALLPF = [False]
KG_RS = 528
KG_CH = 57*KG_RS
KG_TAB = 3072*4
def cmul(a, d, x, y):
    a(f'v_pk_mul_f32 v[{d}:{d+1}], v[{x}:{x+1}], v[{y}:{y+1}] op_sel:[0,0] op_sel_hi:[0,1]')
    a(f'v_pk_fma_f32 v[{d}:{d+1}], v[{x}:{x+1}], v[{y}:{y+1}], v[{d}:{d+1}] op_sel:[1,1,0] op_sel_hi:[1,0,1] neg_lo:[0,1,0]')

def job_kgen(a, ex):
    a.c('---- job kgen')
    a(f's_load_dwordx8 s[4:11], s[0:1], {KA["A_re"]}')
    a(f's_load_dwordx4 s[12:15], s[0:1], {KA["C_re"]}')
    a(f's_load_dwordx2 s[16:17], s[0:1], {KA["log_dt"]}')
    a(f's_load_dwordx2 s[24:25], s[0:1], {KA["ws"]}')
    if MALLPF[0]:
        a(f's_load_dwordx4 s[28:31], s[0:1], {KA["w_in"]}')
        a(f's_load_dwordx2 s[36:37], s[0:1], {KA["w_out"]}')
    a('s_lshl_b32 s22, s3, 8')
    a('v_add_u32 v4, s22, v0'); a('v_lshlrev_b32 v4, 1, v4')
    a('v_lshrrev_b32 v2, 7, v0')
    a('s_lshl_b32 s23, s3, 1'); a('v_add_u32 v3, s23, v2'); a('v_lshlrev_b32 v3, 1, v3')
    a('s_waitcnt lgkmcnt(0)')
    a('global_load_ushort v14, v3, s[16:17]')
    for i, p in enumerate([4, 6, 8, 10, 12, 14]):
        a(f'global_load_ushort v{8+i}, v4, s[{p}:{p+1}]')
    srd(a, 24, 24, WS_SIZE)
    a('v_and_b32 v1, 127, v0'); a('v_lshlrev_b32 v5, 2, v1')
    a(f'v_mul_u32_u24 v6, {KG_CH}, v2'); a('v_add_u32 v5, v5, v6')
    stamp(a, 0)
    a('s_waitcnt vmcnt(0)')
    stamp(a, 1)
    if MALLPF[0]:
        a('s_mov_b32 s32, s30'); a('s_and_b32 s33, s31, 0xffff'); a(f's_mov_b32 s34, {2048*4096}'); a('s_mov_b32 s35, 0x20000')
        srd(a, 28, 28, 576*9216)
        srd(a, 36, 36, 2304*1152)
        a('v_lshrrev_b32 v70, 6, v0'); a('v_readfirstlane_b32 s40, v70'); a('s_lshl_b32 s41, s3, 2'); a('s_add_u32 s40, s40, s41')
        a('v_and_b32 v70, 63, v0'); a('v_lshlrev_b32 v70, 4, v70')
        for srd_s, cnt in ((32, 8), (28, 5), (36, 3)):
            a(f's_mul_i32 s41, s40, {cnt*1024}')
            for i in range(cnt):
                if i == 4: a('s_add_u32 s41, s41, 4096')
                a(f'buffer_load_dwordx4 v[112:115], v70, s[{srd_s}:{srd_s+3}], s41 offen' + (f' offset:{(i % 4)*1024}' if i % 4 else ''))
    L_HI = struct.unpack('<f', struct.pack('<f', LOG2E))[0]
    L_LO = LOG2E - L_HI
    a('v_lshlrev_b32 v14, 16, v14')
    a(f'v_mul_f32 v15, {H(L_HI)}, v14')
    a(f's_mov_b32 s22, {H(L_HI)}')
    a('v_fma_f32 v16, v14, s22, -v15')
    a(f'v_fmac_f32 v16, {H(L_LO)}, v14')
    a('v_exp_f32 v15, v15')
    a(f'v_mul_f32 v16, {H(0.6931471805599453)}, v16')
    for i in range(6): a(f'v_lshlrev_b32 v{8+i}, 16, v{8+i}')
    a('v_fma_f32 v15, v15, v16, v15')
    a('v_cvt_pk_bf16_f32 v15, v15, v15')
    a('v_and_b32 v15, 0xffff0000, v15')
    a('v_mul_f32 v8, v15, v8'); a('v_mul_f32 v9, v15, v9')
    a(f'v_mul_f32 v8, {H(LOG2E)}, v8')
    a(f'v_mul_f32 v9, {H(1/(2*3.141592653589793))}, v9')
    a('v_mul_f32 v10, v15, v10'); a('v_mul_f32 v11, v15, v11')
    a('v_mul_f32 v18, v12, v10'); a('v_fma_f32 v18, -v13, v11, v18')
    a('v_mul_f32 v19, v12, v11'); a('v_fma_f32 v19, v13, v10, v19')
    def cexp(d, mulc):
        if mulc != 1:
            a(f'v_mul_f32 v16, {H(float(mulc))}, v8'); a(f'v_mul_f32 v17, {H(float(mulc))}, v9')
            x, y = 16, 17
        else:
            x, y = 8, 9
        a(f'v_exp_f32 v26, v{x}'); a(f'v_fract_f32 v27, v{y}')
        a(f'v_cos_f32 v{d}, v27'); a(f'v_sin_f32 v{d+1}, v27')
        a(f'v_mul_f32 v{d}, v26, v{d}'); a(f'v_mul_f32 v{d+1}, v26, v{d+1}')
    cexp(20, 1); cexp(22, 8); cexp(24, 128)
    def cmul_l(d, x, y):
        return [f'v_pk_mul_f32 v[{d}:{d+1}], v[{x}:{x+1}], v[{y}:{y+1}] op_sel:[0,0] op_sel_hi:[0,1]',
                f'v_pk_fma_f32 v[{d}:{d+1}], v[{x}:{x+1}], v[{y}:{y+1}], v[{d}:{d+1}] op_sel:[1,1,0] op_sel_hi:[1,0,1] neg_lo:[0,1,0]']
    def put_l(row, src, t, neg=False):
        return [f'v_cvt_pk_bf16_f32 v{t}, v{src}, {"-" if neg else ""}v{src+1}', f'ds_write_b32 v5, v{t} offset:{row*KG_RS}']
    def weave(chains):
        chains = [list(c) for c in chains]
        while any(chains):
            for c in chains:
                if c: a(c.pop(0))
    Q = {1: 20}
    for r in range(2, 8): Q[r] = 30 + 2*(r-2)
    P = {1: 24}
    for i in range(2, 8): P[i] = 42 + 2*(i-2)
    G = [18, 28]
    a('v_mov_b32 v68, 0x00003f80')
    a('ds_write_b32 v5, v68 offset:0')
    cq = put_l(1, 20, 60)
    for r in range(2, 8): cq += cmul_l(Q[r], Q[r-1], 20) + put_l(r, Q[r], 60)
    cg = put_l(41, G[0], 61, neg=True)
    for j in range(1, 8): cg += cmul_l(G[j % 2], G[(j-1) % 2], 22) + put_l(41 + j, G[j % 2], 61, neg=True)
    cp = put_l(8, 24, 62)
    for i in range(2, 8):
        cp += cmul_l(P[i], P[i-1], 24)
        row = 16 + (i-2)*4 if i < 4 else 24 + (i-4)*2
        cp += put_l(row, P[i], 62)
    weave([cq, cg, cp])
    cg = []
    for j in range(8, 16): cg += cmul_l(G[j % 2], G[(j-1) % 2], 22) + put_l(41 + j, G[j % 2], 61, neg=True)
    cp = []
    pc = P[7]
    for i in range(8, 17):
        pn = 54 + 2*(i % 2)
        cp += cmul_l(pn, pc, 24) + put_l(32 + (i-8), pn, 62); pc = pn
    prods = [(P[1], Q[r], 8 + r) for r in range(1, 8)]
    prods += [(P[i], Q[r], 16 + (i-2)*4 + 1 + x) for i in (2, 3) for x, r in enumerate((2, 4, 6))]
    prods += [(P[i], Q[4], 24 + (i-4)*2 + 1) for i in (4, 5, 6, 7)]
    ca, cb_ = [], []
    for k, (x, y, row) in enumerate(prods):
        if k % 2 == 0: ca += cmul_l(58, x, y) + put_l(row, 58, 63)
        else: cb_ += cmul_l(64, x, y) + put_l(row, 64, 66)
    weave([cg, cp, ca, cb_])
    a('s_waitcnt lgkmcnt(0)')
    a('s_barrier')
    stamp(a, 2)
    a('v_and_b32 v1, 63, v0'); a('v_and_b32 v7, 15, v1'); a('v_lshrrev_b32 v3, 4, v1')
    a(f'v_mul_u32_u24 v4, {KG_RS}, v7'); a('v_lshl_add_u32 v4, v3, 4, v4'); a('v_add_u32 v4, v4, v6')
    a('v_lshrrev_b32 v5, 6, v0'); a('v_readfirstlane_b32 s22, v5'); a('s_and_b32 s23, s22, 1')
    for s in range(8):
        a(f'ds_read_b128 v[{8+4*s}:{11+4*s}], v4 offset:{41*KG_RS + s*64}')
    lab1 = a.newlabel('kg_t2'); lab2 = a.newlabel('kg_join')
    a('s_cmp_eq_u32 s23, 1'); a(f's_cbranch_scc1 {lab1}')
    for T in range(2):
        for s in range(8):
            a(f'ds_read_b128 v[{40+4*s+32*T}:{43+4*s+32*T}], v4 offset:{T*16*KG_RS + s*64}')
    for T in range(2):
        for i in range(4): a(f'v_mov_b32 v{104+4*T+i}, 0')
    for T in range(2):
        for s in range(8):
            a(f's_waitcnt lgkmcnt({min(15, 15 - s - 8*T)})')
            a(f'v_mfma_f32_16x16x32_bf16 v[{104+4*T}:{107+4*T}], v[{40+4*s+32*T}:{43+4*s+32*T}], v[{8+4*s}:{11+4*s}], v[{104+4*T}:{107+4*T}]')
    a('s_barrier')
    a('v_lshrrev_b32 v8, 1, v3'); a('v_lshlrev_b32 v8, 7, v8'); a('v_and_b32 v9, 1, v3'); a('v_lshl_add_u32 v8, v9, 2, v8')
    a('v_lshl_add_u32 v8, v7, 3, v8'); a('v_lshl_add_u32 v8, v8, 2, v6')
    a('ds_write_b128 v8, v[104:107]')
    a('v_lshlrev_b32 v9, 7, v3'); a('v_add_u32 v9, 256, v9')
    a('v_lshlrev_b32 v10, 8, v3')
    a('v_cmp_gt_u32 vcc, 2, v3')
    a('v_cndmask_b32 v9, v10, v9, vcc')
    a('v_lshl_add_u32 v9, v7, 3, v9'); a('v_lshl_add_u32 v9, v9, 2, v6')
    for i in range(4):
        oa = 2*i*4; ob = (128*(i >> 1) + 4*(i & 1))*4
        a(f'v_mov_b32 v10, {ob}'); a(f'v_cndmask_b32 v10, v10, {oa}, vcc' if oa <= 64 else 'BAD')
        a('v_add_u32 v10, v10, v9')
        a(f'ds_write_b32 v10, v{108+i}')
    a(f's_branch {lab2}')
    a.label(lab1)
    for s in range(8):
        a(f'ds_read_b128 v[{40+4*s}:{43+4*s}], v4 offset:{32*KG_RS + s*64}')
    for i in range(4): a(f'v_mov_b32 v{104+i}, 0')
    for s in range(8):
        a(f's_waitcnt lgkmcnt({7-s})')
        a(f'v_mfma_f32_16x16x32_bf16 v[104:107], v[{40+4*s}:{43+4*s}], v[{8+4*s}:{11+4*s}], v[104:107]')
    a('s_barrier')
    a('v_lshlrev_b32 v8, 9, v3'); a('v_lshl_add_u32 v8, v7, 3, v8'); a('v_add_u32 v8, 1024, v8'); a('v_lshl_add_u32 v8, v8, 2, v6')
    for i in range(4):
        a(f'ds_write_b32 v8, v{104+i} offset:{i*512}')
    a.label(lab2)
    a('s_waitcnt lgkmcnt(0)')
    a('s_barrier')
    stamp(a, 3)
    a('v_and_b32 v1, 127, v0')
    a('s_lshl_b32 s22, s3, 13'); a(f's_add_u32 s22, s22, {WS_KK}')
    a('v_lshlrev_b32 v4, 12, v2'); a('v_lshl_add_u32 v4, v1, 4, v4')
    a('v_lshlrev_b32 v9, 5, v1'); a('v_add_u32 v9, v9, v6'); a('v_add_u32 v9, 4096, v9')
    a('ds_read_b32 v24, v9'); a('ds_read_b32 v25, v9 offset:32')
    a('v_cmp_lt_u32 vcc, 31, v1'); a('v_cndmask_b32 v8, 0, 1, vcc')
    a('v_cmp_lt_u32 vcc, 63, v1'); a('v_cndmask_b32 v8, v8, 2, vcc')
    a('v_lshlrev_b32 v9, 3, v1')
    a('v_lshlrev_b32 v10, v8, -1')
    a('v_min_u32 v11, 1, v8')
    a('v_not_b32 v12, v10'); a('v_lshrrev_b32 v12, 1, v12')
    for e in range(8):
        t = 13 + (e % 2)
        a(f'v_add_u32 v{t}, {e}, v9')
        a(f'v_bfe_u32 v{26 + e % 2}, v{t}, v8, v11')
        a(f'v_add3_u32 v{t}, v{t}, v12, v{26 + e % 2}')
        a(f'v_and_b32 v{t}, v{t}, v10')
        a(f'v_lshl_add_u32 v{t}, v{t}, 2, v6')
        a(f'ds_read_b32 v{16+e}, v{t}')
    a('v_and_b32 v8, 1, v1'); a('v_cmp_eq_u32 vcc, 0, v8')
    a('s_waitcnt lgkmcnt(8)')
    a('v_cvt_pk_bf16_f32 v36, v24, v24'); a('v_cvt_pk_bf16_f32 v39, v25, v25')
    a('v_cndmask_b32 v26, v25, v24, vcc')
    a('v_mov_b32 v37, v36'); a('v_cvt_pk_bf16_f32 v38, v26, v25')
    a(f'buffer_store_dwordx4 v[36:39], v4, s[24:27], s22 offen offset:2048 sc1')
    a('s_waitcnt lgkmcnt(0)')
    for e in range(4):
        a(f'v_cvt_pk_bf16_f32 v{32+e}, v{16+2*e}, v{17+2*e}')
    a(f'buffer_store_dwordx4 v[32:35], v4, s[24:27], s22 offen sc1')
    a(f's_branch {ex}')

JOBS = [('k0_kgen', 288), ('k0_T', 64), ('k0_mod', 108)]
def gen_k0(a, kidx=0):
    name = 'k0_kernel'
    kstart(a, name, 112)
    n = dispatch(a, name, JOBS)
    ex = f'{name}_exit'
    fn = dict(k0_T=job_T, k0_mod=job_mod, k0_kgen=job_kgen, k0_P2=job_P2, k0_P3=job_P3)
    for lab, cnt in JOBS:
        a.label(lab); fn[lab](a, ex)
    kexit(a, name, kidx)
    return dict(name=name, grid=n, block=256, lds=max(32*RSL, 2*KG_CH), vgpr=116, accum=116, sgpr=102)
```

```python
from common import *
from gen_k0 import tile_load, tile_to_lds, tr_addr, RSL, job_P2, job_P3

CS = 4160
KC_END = 8*CS
HR = KC_END
CONV_LDS = HR + 4608

def job_conv(a, ex):
    a.c('---- job conv')
    a(f's_load_dwordx2 s[8:9], s[0:1], {KA["ws"]}')
    a(f's_load_dwordx2 s[6:7], s[0:1], {KA["Dskip"]}')
    a('s_lshr_b32 s12, s3, 1'); a('s_lshl_b32 s12, s12, 2')
    a('s_lshl_b32 s13, s3, 2')
    a('v_lshlrev_b32 v1, 4, v0')
    a('v_and_b32 v2, 63, v0'); a('v_lshrrev_b32 v3, 6, v0')
    a('v_and_b32 v4, 15, v2'); a('v_lshrrev_b32 v5, 4, v2')
    a('v_subrev_u32 v16, 16, v1'); a('v_max_i32 v16, 0, v16')
    a('v_lshrrev_b32 v17, 2, v0'); a('v_mul_u32_u24 v17, 36864, v17'); a('v_and_b32 v18, 3, v0'); a('v_lshl_add_u32 v17, v18, 4, v17')
    a('v_lshlrev_b32 v18, 5, v0')
    a('v_lshlrev_b32 v6, 9, v3'); a('v_lshl_add_u32 v6, v4, 4, v6'); a('v_lshl_add_u32 v6, v5, 2, v6')
    a('v_lshrrev_b32 v19, 5, v6'); a('v_mul_u32_u24 v19, 36864, v19'); a('v_and_b32 v20, 31, v6'); a('v_lshl_add_u32 v19, v20, 1, v19')
    a('s_lshl_b32 s19, s3, 12'); a(f's_add_u32 s19, s19, {WS_KK}')
    a('s_lshl_b32 s20, s3, 6'); a(f's_add_u32 s20, s20, {WS_XT}')
    a(f's_mov_b32 s21, {WS_RHO}'); a(f's_mov_b32 s22, {WS_MU}'); a(f's_add_u32 s23, s20, {8*36864}')
    a('s_waitcnt lgkmcnt(0)')
    a('s_load_dword s14, s[6:7], s12')
    a(f's_add_u32 s15, s13, {WS_MOD}')
    a('s_load_dword s16, s[8:9], s15')
    a(f's_add_u32 s15, s13, {WS_MOD + 576*4}')
    a('s_load_dword s17, s[8:9], s15')
    a(f's_add_u32 s15, s13, {WS_MOD + 1152*4}')
    a('s_load_dword s18, s[8:9], s15')
    srd(a, 8, 8, WS_SIZE)
    a('buffer_load_dwordx4 v[32:35], v16, s[8:11], s19 offen')
    a('buffer_load_dwordx4 v[36:39], v1, s[8:11], s19 offen')
    a('buffer_load_dwordx4 v[40:43], v17, s[8:11], s20 offen')
    a('buffer_load_dwordx4 v[44:47], v18, s[8:11], s21 offen')
    a('buffer_load_dwordx4 v[48:51], v18, s[8:11], s21 offen offset:16')
    a('buffer_load_dwordx4 v[52:55], v18, s[8:11], s22 offen')
    a('buffer_load_dwordx4 v[56:59], v18, s[8:11], s22 offen offset:16')
    a('buffer_load_dwordx2 v[8:9], v19, s[8:11], s20 offen')
    a('buffer_load_dwordx2 v[10:11], v19, s[8:11], s23 offen')
    for i in range(4): a(f'v_mov_b32 v{64+i}, 0')
    a(f'v_mul_u32_u24 v21, {CS}, v0')
    a(f'v_add_u32 v22, {HR + 4096 - 8*16}, v1')
    a('v_cmp_gt_u32 vcc, 8, v0'); a('v_cndmask_b32 v21, v22, v21, vcc')
    a('v_cmp_gt_u32 vcc, 38, v0')
    a('s_and_saveexec_b64 s[24:25], vcc')
    a('ds_write_b128 v21, v[64:67]')
    a('s_mov_b64 exec, s[24:25]')
    a('v_and_b32 v12, 7, v4'); a(f'v_mul_u32_u24 v12, {CS}, v12')
    a('v_and_b32 v23, 8, v4'); a('v_lshl_add_u32 v23, v5, 3, v23'); a('v_lshl_add_u32 v23, v3, 6, v23')
    a('v_lshl_add_u32 v12, v23, 1, v12')
    a('v_lshlrev_b32 v13, 4, v4'); a('v_sub_u32 v13, 240, v13'); a('v_lshl_add_u32 v13, v5, 3, v13'); a('v_lshl_add_u32 v13, v3, 6, v13')
    a(f'v_lshlrev_b32 v13, 1, v13'); a(f'v_add_u32 v13, {HR}, v13')
    stamp(a, 0)
    a('s_waitcnt lgkmcnt(0)')
    a('s_and_b32 s15, s3, 1'); a('s_cmp_eq_u32 s15, 0'); a('s_cselect_b32 s15, 16, 0'); a('s_lshl_b32 s14, s14, s15'); a('s_and_b32 s14, s14, 0xffff0000')
    a('v_mov_b32 v60, s17')
    a('v_add_f32 v60, 1.0, v60'); a('v_cvt_pk_bf16_f32 v60, v60, v60'); a('v_and_b32 v60, 0xffff0000, v60'); a('v_mov_b32 v61, v60')
    a('v_mov_b32 v62, s16'); a('v_mov_b32 v63, s16')
    a('v_add_u32 v24, 16, v1')
    a('s_waitcnt vmcnt(7)')
    a('v_cmp_eq_u32 vcc, 0, v0')
    for i in range(4): a(f'v_cndmask_b32 v{32+i}, v{32+i}, 0, vcc')
    for c in range(8):
        off = 1 + c
        r = 32 + off//2
        if off % 2 == 0:
            if r % 2 == 0:
                a(f'ds_write_b128 v24, v[{r}:{r+3}] offset:{c*CS}')
            else:
                t = 68 + 4*((c//2) % 2)
                for i in range(4): a(f'v_mov_b32 v{t+i}, v{r+i}')
                a(f'ds_write_b128 v24, v[{t}:{t+3}] offset:{c*CS}')
        else:
            t = 76 + 4*((c//2) % 2)
            for i in range(4): a(f'v_alignbit_b32 v{t+i}, v{r+i+1}, v{r+i}, 16')
            a(f'ds_write_b128 v24, v[{t}:{t+3}] offset:{c*CS}')
    stamp(a, 1)
    a('s_waitcnt vmcnt(2)')
    for i in range(4):
        a(f'v_lshlrev_b32 v{84+2*i}, 16, v{40+i}'); a(f'v_and_b32 v{85+2*i}, 0xffff0000, v{40+i}')
    for i in range(4):
        a(f'v_pk_fma_f32 v[{84+2*i}:{85+2*i}], v[{84+2*i}:{85+2*i}], v[{44+2*i}:{45+2*i}], v[{52+2*i}:{53+2*i}] neg_lo:[0,0,1] neg_hi:[0,0,1]')
    for i in range(4):
        a(f'v_pk_fma_f32 v[{84+2*i}:{85+2*i}], v[{84+2*i}:{85+2*i}], v[60:61], v[62:63]')
    for i in range(4):
        a(f'v_cvt_pk_bf16_f32 v{92+i}, v{84+7-2*i}, v{84+6-2*i}')
    a(f'v_sub_u32 v25, {HR + 4080}, v1')
    a('ds_write_b128 v25, v[92:95]')
    a('s_waitcnt lgkmcnt(0)')
    a('s_barrier')
    stamp(a, 2)
    AF, FF, ACC = 32, 64, 96
    started = set()
    for ph in range(2):
        po = ph*64
        for m in range(8):
            a(f'ds_read_b128 v[{FF+4*m}:{FF+4*m+3}], v13 offset:{(7-m)*512 + po}')
            a(f'ds_read_b128 v[{AF+4*m}:{AF+4*m+3}], v12 offset:{m*512 + po}')
        for s_ in range(8):
            a(f's_waitcnt lgkmcnt({min(15, 14 - 2*s_)})')
            for m in range(s_+1):
                for u in range(s_+1):
                    if max(m, u) != s_: continue
                    n = m + u
                    if n > 7: continue
                    c = f'v[{ACC+4*n}:{ACC+4*n+3}]' if n in started else '0'
                    started.add(n)
                    a(f'v_mfma_f32_16x16x32_bf16 v[{ACC+4*n}:{ACC+4*n+3}], v[{AF+4*m}:{AF+4*m+3}], v[{FF+4*u}:{FF+4*u+3}], {c}')
    stamp(a, 3)
    a('v_lshlrev_b32 v16, 4, v2'); a('v_lshl_add_u32 v17, v3, 13, v16')
    a('v_lshl_add_u32 v18, v3, 11, v16')
    a('v_lshlrev_b32 v19, 1, v6'); a(f'v_sub_u32 v19, {HR + 2044*2}, v19'); a('v_subrev_u32 v20, 512, v19')
    a('s_and_b32 s24, s3, 3'); a('s_lshr_b32 s25, s3, 3'); a('s_and_b32 s25, s25, 1'); a('s_lshl_b32 s25, s25, 2'); a('s_add_u32 s24, s24, s25'); a('s_lshl_b32 s24, s24, 1')
    a('v_and_b32 v21, 7, v4'); a('v_lshlrev_b32 v21, 1, v21'); a('v_lshrrev_b32 v22, 1, v5'); a('v_add_u32 v21, v21, v22')
    a('v_xor_b32 v21, s24, v21'); a('v_lshlrev_b32 v21, 4, v21'); a('v_and_b32 v22, 1, v5'); a('v_lshl_add_u32 v21, v22, 3, v21')
    a('v_lshrrev_b32 v22, 3, v4'); a('v_lshl_add_u32 v22, v3, 2, v22')
    a(f'v_mul_u32_u24 v22, {576*256}, v22'); a('v_add_u32 v21, v21, v22')
    a('s_lshl_b32 s25, s3, 8'); a(f's_add_u32 s25, s25, {WS_X1T}'); a(f's_add_u32 s26, s25, {2*576*256}')
    a('s_barrier')
    for n in range(8):
        a(f'ds_write_b128 v17, v[{ACC+4*n}:{ACC+4*n+3}] offset:{n*1024}')
    a('s_waitcnt lgkmcnt(0)')
    a('s_barrier')
    for src in range(4):
        for j in range(2):
            a(f'ds_read_b128 v[{32+16*j+4*src}:{35+16*j+4*src}], v18 offset:{src*8192 + j*1024}')
    a('ds_read_b64 v[64:65], v19')
    a('ds_read_b64 v[66:67], v20')
    a('s_waitcnt vmcnt(0) lgkmcnt(0)')
    for j in range(2):
        b = 32 + 16*j
        for i in range(0, 4, 2):
            a(f'v_pk_add_f32 v[{b+i}:{b+i+1}], v[{b+i}:{b+i+1}], v[{b+4+i}:{b+5+i}]')
            a(f'v_pk_add_f32 v[{b+8+i}:{b+9+i}], v[{b+8+i}:{b+9+i}], v[{b+12+i}:{b+13+i}]')
        for i in range(0, 4, 2):
            a(f'v_pk_add_f32 v[{b+i}:{b+i+1}], v[{b+i}:{b+i+1}], v[{b+8+i}:{b+9+i}]')
        hr = 64 + 2*j; xr = 8 + 2*j; t = 68 + 8*j
        a(f'v_and_b32 v{t}, 0xffff0000, v{hr+1}'); a(f'v_lshlrev_b32 v{t+1}, 16, v{hr+1}')
        a(f'v_and_b32 v{t+2}, 0xffff0000, v{hr}'); a(f'v_lshlrev_b32 v{t+3}, 16, v{hr}')
        for r in range(4): a(f'v_fma_f32 v{b+r}, v{t+r}, s14, v{b+r}')
        a(f'v_lshlrev_b32 v{t+4}, 16, v{xr}'); a(f'v_and_b32 v{t+5}, 0xffff0000, v{xr}')
        a(f'v_lshlrev_b32 v{t+6}, 16, v{xr+1}'); a(f'v_and_b32 v{t+7}, 0xffff0000, v{xr+1}')
        for r in range(4): a(f'v_fma_f32 v{b+r}, v{b+r}, s18, v{t+4+r}')
        a(f'v_cvt_pk_bf16_f32 v{84+2*j}, v{b}, v{b+1}'); a(f'v_cvt_pk_bf16_f32 v{85+2*j}, v{b+2}, v{b+3}')
        a(f'buffer_store_dwordx2 v[{84+2*j}:{85+2*j}], v21, s[8:11], s{25+j} offen sc1')
    if WSP_PF[0]:
        a(f's_cmp_ge_u32 s3, {WSP_PF[0]}'); a(f's_cbranch_scc1 {ex}')
        a(f's_load_dwordx2 s[4:5], s[0:1], {KA["w_sp"]}')
        a('v_readfirstlane_b32 s28, v3'); a('s_lshl_b32 s29, s3, 2'); a('s_add_u32 s28, s28, s29'); a(f's_mul_i32 s28, s28, {8192*256//WSP_PF[0]}')
        a('v_lshlrev_b32 v16, 7, v2')
        a('s_waitcnt lgkmcnt(0)')
        srd(a, 4, 4, 2048*4096)
        for k in range(256//WSP_PF[0]):
            a('buffer_load_dword v15, v16, s[4:7], s28 offen')
            a('s_add_u32 s28, s28, 8192')
    a(f's_branch {ex}')

def job_P1(a, ex):
    a.c('---- job P1: w_in fold + re-layout')
    a(f's_load_dwordx2 s[4:5], s[0:1], {KA["w_in"]}')
    a(f's_load_dwordx2 s[8:9], s[0:1], {KA["ws"]}')
    a('s_waitcnt lgkmcnt(0)')
    srd(a, 4, 4, 576*9216)
    srd(a, 8, 8, WS_SIZE)
    a('s_lshr_b32 s20, s3, 3'); a('s_and_b32 s21, s3, 7')
    a(f's_mul_i32 s12, s20, {32*9216}'); a('s_mul_i32 s13, s21, 1152'); a('s_add_u32 s12, s12, s13')
    tile_load(a, 4, 's12', 9216)
    a('v_lshlrev_b32 v4, 2, v1'); a('s_lshl_b32 s13, s20, 7'); a(f's_add_u32 s13, s13, {WS_MOD + 4*576*4}')
    a('buffer_load_dword v48, v4, s[8:11], s13 offen')
    a('s_waitcnt vmcnt(0)')
    a('v_add_f32 v48, 1.0, v48'); a('v_cvt_pk_bf16_f32 v48, v48, v48'); a('v_and_b32 v48, 0xffff0000, v48'); a('v_mov_b32 v49, v48')
    for i in range(36):
        t = 52 + 2*(i % 4)
        a(f'v_lshlrev_b32 v{t}, 16, v{8+i}'); a(f'v_and_b32 v{t+1}, 0xffff0000, v{8+i}')
        a(f'v_pk_mul_f32 v[{t}:{t+1}], v[{t}:{t+1}], v[48:49]')
        a(f'v_cvt_pk_bf16_f32 v{8+i}, v{t}, v{t+1}')
    tile_to_lds(a)
    a('s_waitcnt lgkmcnt(0)')
    a('s_barrier')
    tr_addr(a, 3, 4, wave_bytes=288, m_bytes=32)
    a('v_lshlrev_b32 v50, 4, v4')
    a('v_readfirstlane_b32 s14, v5')
    a('s_lshl_b32 s22, s21, 2'); a('s_add_u32 s22, s22, s14')
    a('s_cmp_lt_u32 s22, 16'); a('s_cselect_b32 s16, 1, 0'); a('s_and_b32 s22, s22, 15')
    a('s_lshl_b32 s17, s22, 1'); a('s_add_u32 s17, s17, s16'); a('s_mul_i32 s17, s17, 18'); a('s_add_u32 s17, s17, s20')
    a('s_mul_i32 s17, s17, 9216'); a(f's_add_u32 s17, s17, {WS_W1T}'); a('s_add_u32 s18, s17, 4096'); a('s_add_u32 s19, s17, 8192')
    for m in range(9):
        a(f's_waitcnt lgkmcnt({min(15, 2*(8-m))})')
        a(f'buffer_store_dwordx4 v[{8+4*m}:{11+4*m}], v50, s[8:11], s{17 + m//4} offen' + (f' offset:{(m % 4)*1024}' if m % 4 else '') + ' sc1')
    a(f's_branch {ex}')

def job_CS(a, ex):
    a.c('---- job CS')
    a('s_and_b32 s13, s3, 7'); a('s_lshl_b32 s13, s13, 1'); a('s_bfe_u32 s14, s3, 0x10003'); a('s_or_b32 s13, s13, s14'); a('s_andn2_b32 s3, s3, 15'); a('s_or_b32 s3, s3, s13')
    a(f's_load_dwordx2 s[6:7], s[0:1], {KA["w_in"]}')
    a(f's_load_dwordx2 s[16:17], s[0:1], {KA["ws"]}')
    a('v_and_b32 v1, 3, v0')
    a('v_lshrrev_b32 v2, 2, v0')
    a('v_mul_u32_u24 v3, 9216, v2')
    a('v_lshl_add_u32 v3, v1, 4, v3')
    a('s_lshl_b32 s13, s3, 6')
    a('v_lshlrev_b32 v4, 2, v2')
    a(f's_mov_b32 s20, {WS_MOD + 3*576*4}'); a(f's_mov_b32 s21, {WS_MOD + 4*576*4}')
    a('s_waitcnt lgkmcnt(0)')
    srd(a, 8, 6, 576*9216)
    srd(a, 16, 16, WS_SIZE)
    for i in range(9):
        a(f'buffer_load_dword v{48+i}, v4, s[16:19], s20 offen offset:{i*256}')
        a(f'buffer_load_dword v{58+i}, v4, s[16:19], s21 offen offset:{i*256}')
    for i in range(9):
        a(f'buffer_load_dwordx4 v[{8+4*i}:{11+4*i}], v3, s[8:11], s13 offen')
        if i < 8: a(f's_add_u32 s13, s13, {64*9216}')
    for i in range(16): a(f'v_mov_b32 v{70+i}, 0')
    a('s_waitcnt vmcnt(9)')
    for i in range(9):
        a(f'v_add_f32 v{58+i}, 1.0, v{58+i}'); a(f'v_lshrrev_b32 v{88+i}, 16, v{48+i}')
        a(f'v_cvt_pk_bf16_f32 v{58+i}, 0, v{58+i}'); a(f'v_lshrrev_b32 v{98+i}, 16, v{58+i}')
    for i in range(9):
        a(f's_waitcnt vmcnt({8-i})')
        for k in range(4):
            r = 8+4*i+k
            a(f'v_dot2c_f32_bf16 v{70+2*k}, v{r}, v{98+i}'); a(f'v_dot2c_f32_bf16 v{71+2*k}, v{r}, v{58+i}')
            a(f'v_dot2c_f32_bf16 v{78+2*k}, v{r}, v{88+i}'); a(f'v_dot2c_f32_bf16 v{79+2*k}, v{r}, v{48+i}')
    for m in (4, 8):
        for k in range(16):
            a(f'v_add_f32_dpp v{70+k}, v{70+k}, v{70+k} row_ror:{m} row_mask:0xf bank_mask:0xf')
    a('v_lshrrev_b32 v5, 4, v0'); a('v_lshlrev_b32 v5, 7, v5'); a('v_lshl_add_u32 v5, v1, 5, v5')
    a('v_bfe_u32 v6, v0, 2, 2')
    a('v_cmp_eq_u32 vcc, 0, v6')
    a('s_and_saveexec_b64 s[14:15], vcc')
    a('ds_write_b128 v5, v[70:73]'); a('ds_write_b128 v5, v[74:77] offset:16')
    a('ds_write_b128 v5, v[78:81] offset:2048'); a('ds_write_b128 v5, v[82:85] offset:2064')
    a('s_mov_b64 exec, s[14:15]')
    a('s_waitcnt lgkmcnt(0)')
    a('s_barrier')
    a('v_cmp_gt_u32 vcc, 64, v0')
    a('s_and_saveexec_b64 s[14:15], vcc')
    a(f's_cbranch_execz {ex}')
    a('v_and_b32 v5, 31, v0'); a('v_lshlrev_b32 v5, 2, v5'); a('v_lshrrev_b32 v6, 5, v0'); a('v_lshl_add_u32 v7, v6, 11, v5')
    for i in range(16):
        a(f'ds_read_b32 v{8+i}, v7 offset:{i*128}')
    a('s_waitcnt lgkmcnt(0)')
    for st in (8, 4, 2, 1):
        for i in range(st):
            a(f'v_add_f32 v{8+i}, v{8+i}, v{8+i+st}')
    a(f'v_mul_u32_u24 v6, {WS_BIAS - WS_CS}, v6'); a('v_add_u32 v5, v5, v6')
    a('s_lshl_b32 s13, s3, 7'); a(f's_add_u32 s13, s13, {WS_CS}')
    a('buffer_store_dword v8, v5, s[16:19], s13 offen sc1')
    a(f's_branch {ex}')

JOBS = [('k1_conv', 576), ('k1_P1', 144), ('k1_CS', 144), ('k1_P2', 72)]
SIDEPRIO = [0]
WSP_PF = [0]
def gen_k1(a, kidx=1):
    name = 'k1_kernel'
    kstart(a, name, 14)
    n = dispatch(a, name, JOBS)
    ex = f'{name}_exit'
    import gen_ka
    fn = dict(k1_conv=job_conv, k1_P1=job_P1, k1_CS=job_CS, k1_P2=job_P2, k1_P3=job_P3, k1_PW=lambda a, ex: gen_ka.job_PW(a, ex, flags=False))
    done = set()
    for job in JOBS:
        if job[0] in done: continue
        done.add(job[0])
        a.label(job[0])
        if SIDEPRIO[0] and job[0] != 'k1_conv': a(f's_setprio {SIDEPRIO[0]}')
        fn[job[0]](a, ex)
    kexit(a, name, kidx)
    return dict(name=name, grid=n, block=256, lds=max(32*RSL, CONV_LDS), vgpr=128, accum=128, sgpr=102)
```

```python
from common import *
import gen_k0, gen_k1
from gen_k0 import tile_load, tile_to_lds, tr_addr, RSL, KG_RS, job_P2
from gen_k1 import CS, HR, CONV_LDS

DBG_T, DBG_M, DBG_L = 0, 4, 8
LMODE = ['early']
NT, NM = 64, 108

def dbg_srd(a, d):
    a(f's_load_dwordx2 s[{d}:{d+1}], s[0:1], {KA["dbg"]}')

SLEEP = [8]
def a_signal(a, srd_s, off, total):
    lab = a.newlabel('ka_sig')
    a('v_mov_b32 v120, 1'); a('v_mov_b32 v121, 0')
    a('s_mov_b64 exec, 1')
    a(f'buffer_atomic_add v120, v121, s[{srd_s}:{srd_s+3}], 0 offen offset:{off} sc0 sc1')
    a('s_waitcnt vmcnt(0)')
    a('v_readfirstlane_b32 s60, v120')
    a(f's_cmp_lg_u32 s60, {total-1}'); a(f's_cbranch_scc1 {lab}')
    a('v_mov_b32 v120, 1')
    a(f'buffer_store_dword v120, v121, s[{srd_s}:{srd_s+3}], 0 offen offset:{128 + off} sc1')
    a.label(lab)

def a_poll(a, srd_s, items, wave_s):
    lab = a.newlabel('ka_polled'); lp = a.newlabel('ka_poll')
    a(f's_cmp_lg_u32 s{wave_s}, 0'); a(f's_cbranch_scc1 {lab}')
    a('v_mov_b32 v121, 0')
    a('s_mov_b32 s60, 0x40000')
    a.label(lp)
    o = 128 + (8 if items == [8] else 0)
    a(f'buffer_load_dwordx2 v[122:123], v121, s[{srd_s}:{srd_s+3}], 0 offen offset:{o} sc1')
    a('s_waitcnt vmcnt(0)')
    if len(items) == 2: a('v_and_b32 v122, v122, v123')
    elif items[0] == 4: a('v_mov_b32 v122, v123')
    a('s_sub_u32 s60, s60, 1')
    a('v_readfirstlane_b32 s61, v122')
    a('s_cmp_eq_u32 s60, 0'); a(f's_cbranch_scc1 {lab}')
    a('s_cmp_lg_u32 s61, 0'); a(f's_cbranch_scc1 {lab}')
    a(f's_sleep {SLEEP[0]}')
    a(f's_branch {lp}')
    a.label(lab)
    a('s_barrier')

def job_T(a, ex):
    a.c('---- job T: transpose x + LN1 stats')
    a('s_setprio 2')
    a(f's_load_dwordx2 s[4:5], s[0:1], {KA["x"]}')
    a(f's_load_dwordx2 s[8:9], s[0:1], {KA["ws"]}')
    dbg_srd(a, 24)
    a('s_waitcnt lgkmcnt(0)')
    srd(a, 4, 4, 2048*1152); srd(a, 8, 8, WS_SIZE); srd(a, 24, 24, 256)
    a(f's_mul_i32 s12, s3, {32*1152}')
    tile_load(a, 4, 's12', 1152)
    a('s_lshl_b32 s13, s3, 8'); a(f's_add_u32 s13, s13, {WS_CNT}')
    a('v_mov_b32 v45, 0')
    a('buffer_store_dword v45, v45, s[8:11], s13 offen sc1')
    a('v_mov_b32 v44, 0x3f803f80'); a('v_mov_b32 v46, 0')
    stamp(a, 0)
    a('s_waitcnt vmcnt(0)')
    stamp(a, 1)
    if LMODE[0] == 'L':
        lab = a.newlabel('ka_tl')
        a('v_readfirstlane_b32 s20, v0'); a('s_cmp_lg_u32 s20, 0'); a(f's_cbranch_scc1 {lab}')
        a_signal(a, 24, DBG_L, NT + NM); a('s_mov_b64 exec, -1')
        a.label(lab)
    tile_to_lds(a)
    for i in range(36):
        a(f'v_dot2c_f32_bf16 v45, v{8+i}, v44')
        a(f'v_dot2c_f32_bf16 v46, v{8+i}, v{8+i}')
    a('s_waitcnt lgkmcnt(0)')
    a('s_barrier')
    tr_addr(a, 3, 4, dst=52)
    for m in ('quad_perm:[1,0,3,2]', 'quad_perm:[2,3,0,1]', 'row_half_mirror'):
        a(f'v_add_f32_dpp v45, v45, v45 {m} row_mask:0xf bank_mask:0xf')
        a(f'v_add_f32_dpp v46, v46, v46 {m} row_mask:0xf bank_mask:0xf')
    a(f'v_mul_f32 v45, {H(1.0/576)}, v45'); a(f'v_mul_f32 v46, {H(1.0/576)}, v46')
    a('v_fma_f32 v46, -v45, v45, v46'); a('v_max_f32 v46, 0, v46'); a(f'v_add_f32 v46, {H(1e-5)}, v46')
    a('v_rsq_f32 v48, v46'); a('v_mul_f32 v49, v45, v48')
    a('s_lshl_b32 s13, s3, 7'); a(f's_add_u32 s14, s13, {WS_MU}'); a(f's_add_u32 s13, s13, {WS_RHO}')
    a('v_lshlrev_b32 v3, 2, v1')
    a('v_cmp_eq_u32 vcc, 0, v2')
    a('s_and_saveexec_b64 s[16:17], vcc')
    a('buffer_store_dword v48, v3, s[8:11], s13 offen sc1')
    a('buffer_store_dword v49, v3, s[8:11], s14 offen sc1')
    a('s_mov_b64 exec, s[16:17]')
    a('v_and_b32 v50, 15, v4'); a('v_lshl_add_u32 v50, v5, 4, v50'); a('v_lshlrev_b32 v50, 6, v50'); a('v_lshl_add_u32 v50, v6, 4, v50')
    a(f's_mul_i32 s13, s3, {576*64}'); a(f's_add_u32 s13, s13, {WS_XT}')
    for m in range(9):
        a(f's_waitcnt lgkmcnt({min(15, 2*(8-m))})')
        a(f'buffer_store_dwordx4 v[{52+4*m}:{55+4*m}], v50, s[8:11], s13 offen sc1')
        if m < 8: a(f's_add_u32 s13, s13, {64*64}')
    stamp(a, 2)
    a('v_readfirstlane_b32 s20, v5')
    a('s_waitcnt vmcnt(0)')
    a('s_barrier')
    stamp(a, 3)
    a('s_cmp_lg_u32 s20, 0'); a(f's_cbranch_scc1 {ex}')
    a_signal(a, 24, DBG_T, NT)
    a(f's_branch {ex}')

def job_mod(a, ex):
    b = Asm()
    gen_k0.job_mod(b, ex)
    lines = b.lines
    i0 = next(i for i, l in enumerate(lines) if l.startswith('s_waitcnt lgkmcnt(0)'))
    lines = lines[:i0] + [f's_load_dwordx2 s[24:25], s[0:1], {KA["dbg"]}'] + lines[i0:i0+1] + ['s_and_b32 s25, s25, 0xffff', 's_mov_b32 s26, 256', 's_mov_b32 s27, 0x20000'] + lines[i0+1:]
    assert lines[-1].startswith('s_branch')
    lines = lines[:-1] + ['s_waitcnt vmcnt(0)']
    isplit = next(i for i, l in enumerate(lines) if 'row_ror:4' in l)
    for l in lines[:isplit]: a.lines.append(l)
    if LMODE[0] == 'L':
        lab = a.newlabel('ka_ml')
        a('v_readfirstlane_b32 s20, v0'); a('s_cmp_lg_u32 s20, 0'); a(f's_cbranch_scc1 {lab}')
        a_signal(a, 24, DBG_L, NT + NM); a('s_mov_b64 exec, -1')
        a.label(lab)
    for l in lines[isplit:]: a.lines.append(l)
    a_signal(a, 24, DBG_M, NM)
    a(f's_branch {ex}')

PW_RS = 64
def job_PW(a, ex, flags=True):
    a.c('---- job PW: w_in fold + re-layout + column sums')
    a('s_and_b32 s13, s3, 7'); a('s_lshl_b32 s13, s13, 1'); a('s_bfe_u32 s14, s3, 0x10003'); a('s_or_b32 s13, s13, s14'); a('s_andn2_b32 s3, s3, 15'); a('s_or_b32 s3, s3, s13')
    a(f's_load_dwordx2 s[6:7], s[0:1], {KA["w_in"]}')
    a(f's_load_dwordx2 s[16:17], s[0:1], {KA["ws"]}')
    if flags: dbg_srd(a, 24)
    a('v_lshrrev_b32 v5, 6, v0'); a('v_readfirstlane_b32 s22, v5')
    a('v_and_b32 v1, 3, v0'); a('v_lshrrev_b32 v2, 2, v0')
    a('v_mul_u32_u24 v3, 9216, v2'); a('v_lshl_add_u32 v3, v1, 4, v3')
    a('s_lshl_b32 s13, s3, 6')
    a('v_lshlrev_b32 v4, 2, v2')
    a(f's_mov_b32 s20, {WS_MOD + 3*576*4}'); a(f's_mov_b32 s21, {WS_MOD + 4*576*4}')
    a('s_waitcnt lgkmcnt(0)')
    srd(a, 8, 6, 576*9216); srd(a, 16, 16, WS_SIZE)
    if flags: srd(a, 24, 24, 256)
    if flags and LMODE[0] == 'M': a_poll(a, 24, [DBG_M], 22)
    if not flags:
        for i in range(9):
            a(f'buffer_load_dword v{48+i}, v4, s[16:19], s20 offen offset:{i*256}')
            a(f'buffer_load_dword v{58+i}, v4, s[16:19], s21 offen offset:{i*256}')
    for i in range(9):
        a(f'buffer_load_dwordx4 v[{8+4*i}:{11+4*i}], v3, s[8:11], s13 offen')
        if i < 8: a(f's_add_u32 s13, s13, {64*9216}')
    for i in range(16): a(f'v_mov_b32 v{70+i}, 0')
    a(f'v_mul_u32_u24 v6, {PW_RS}, v2'); a('v_lshl_add_u32 v6, v1, 4, v6')
    a('v_and_b32 v7, 63, v0'); a('v_lshrrev_b32 v112, 4, v7'); a('v_bfe_u32 v113, v7, 2, 2'); a('v_lshl_add_u32 v113, v112, 3, v113'); a(f'v_mul_u32_u24 v113, {PW_RS}, v113')
    a('v_and_b32 v112, 3, v7'); a('v_lshl_add_u32 v113, v112, 3, v113')
    a(f's_mul_i32 s23, s22, {32*PW_RS}'); a('v_add_u32 v113, s23, v113')
    a('v_lshlrev_b32 v114, 4, v7')
    if flags and LMODE[0] != 'M': a_poll(a, 24, [DBG_M], 22)
    if flags:
        for i in range(9):
            a(f'buffer_load_dword v{48+i}, v4, s[16:19], s20 offen offset:{i*256} sc1')
            a(f'buffer_load_dword v{58+i}, v4, s[16:19], s21 offen offset:{i*256} sc1')
    for k in range(2):
        a(f's_lshl_b32 s28, s3, 1');
        if k: a('s_add_u32 s28, s28, 1')
        a('s_mul_i32 s29, s28, 1821'); a('s_lshr_b32 s29, s29, 14')
        a('s_mul_i32 s30, s29, 9'); a('s_sub_u32 s30, s28, s30')
        a('s_cmp_lt_u32 s29, 16'); a('s_cselect_b32 s31, 1, 0'); a('s_and_b32 s29, s29, 15')
        a('s_lshl_b32 s29, s29, 1'); a('s_add_u32 s29, s29, s31'); a(f's_mul_i32 s29, s29, {18*9216}'); a('s_lshl_b32 s30, s30, 10'); a('s_add_u32 s29, s29, s30')
        a(f's_mul_i32 s30, s22, 9216'); a('s_add_u32 s29, s29, s30'); a(f's_add_u32 s{32+k}, s29, {WS_W1T}')
    a('s_waitcnt vmcnt(0)')
    for i in range(9):
        a(f'v_add_f32 v{58+i}, 1.0, v{58+i}'); a(f'v_lshrrev_b32 v{88+i}, 16, v{48+i}')
        a(f'v_cvt_pk_bf16_f32 v{58+i}, 0, v{58+i}'); a(f'v_lshrrev_b32 v{98+i}, 16, v{58+i}')
    for i in range(9):
        for k in range(4):
            r = 8+4*i+k
            a(f'v_dot2c_f32_bf16 v{70+2*k}, v{r}, v{98+i}'); a(f'v_dot2c_f32_bf16 v{71+2*k}, v{r}, v{58+i}')
            a(f'v_dot2c_f32_bf16 v{78+2*k}, v{r}, v{88+i}'); a(f'v_dot2c_f32_bf16 v{79+2*k}, v{r}, v{48+i}')
        for k in range(4):
            r = 8+4*i+k; t = 108 + 2*(k % 2)
            a(f'v_lshlrev_b32 v{t}, 16, v{r}'); a(f'v_and_b32 v{t+1}, 0xffff0000, v{r}')
            a(f'v_mul_f32 v{t}, v{t}, v{58+i}'); a(f'v_mul_f32 v{t+1}, v{t+1}, v{58+i}')
            a(f'v_cvt_pk_bf16_f32 v{r}, v{t}, v{t+1}')
        a(f'ds_write_b128 v6, v[{8+4*i}:{11+4*i}] offset:{i*64*PW_RS}')
    for m in (4, 8):
        for k in range(16):
            a(f'v_add_f32_dpp v{70+k}, v{70+k}, v{70+k} row_ror:{m} row_mask:0xf bank_mask:0xf')
    a('s_waitcnt lgkmcnt(0)')
    a('s_barrier')
    nst = 5
    for x in range(nst):
        for k in range(2):
            r = 8 + (x*2 + k)*4
            lab = None
            off = x*4*32*PW_RS + k*32
            a(f'ds_read_b64_tr_b16 v[{r}:{r+1}], v113 offset:{off}'); a(f'ds_read_b64_tr_b16 v[{r+2}:{r+3}], v113 offset:{off + 4*PW_RS}')
    for x in range(nst):
        skip = None
        if x == 4:
            skip = a.newlabel('ka_pw4'); a('s_cmp_ge_u32 s22, 2'); a(f's_cbranch_scc1 {skip}')
        for k in range(2):
            r = 8 + (x*2 + k)*4
            a(f's_waitcnt lgkmcnt({min(15, 4*(nst - x) - 2*k - 2)})')
            a(f's_add_u32 s34, s{32+k}, {x*4*9216}')
            a(f'buffer_store_dwordx4 v[{r}:{r+3}], v114, s[16:19], s34 offen sc1')
        if skip: a.label(skip)
    a('s_waitcnt lgkmcnt(0)')
    a('s_barrier')
    a('v_lshrrev_b32 v5, 4, v0'); a('v_lshlrev_b32 v5, 7, v5'); a('v_lshl_add_u32 v5, v1, 5, v5')
    a('v_bfe_u32 v6, v0, 2, 2')
    a('v_cmp_eq_u32 vcc, 0, v6')
    a('s_and_saveexec_b64 s[14:15], vcc')
    a('ds_write_b128 v5, v[70:73]'); a('ds_write_b128 v5, v[74:77] offset:16')
    a('ds_write_b128 v5, v[78:81] offset:2048'); a('ds_write_b128 v5, v[82:85] offset:2064')
    a('s_mov_b64 exec, s[14:15]')
    a('s_waitcnt lgkmcnt(0)')
    a('s_barrier')
    a('v_cmp_gt_u32 vcc, 64, v0')
    a('s_and_saveexec_b64 s[14:15], vcc')
    a(f's_cbranch_execz {ex}')
    a('v_and_b32 v5, 31, v0'); a('v_lshlrev_b32 v5, 2, v5'); a('v_lshrrev_b32 v6, 5, v0'); a('v_lshl_add_u32 v7, v6, 11, v5')
    for i in range(16):
        a(f'ds_read_b32 v{8+i}, v7 offset:{i*128}')
    a('s_waitcnt lgkmcnt(0)')
    for st in (8, 4, 2, 1):
        for i in range(st):
            a(f'v_add_f32 v{8+i}, v{8+i}, v{8+i+st}')
    a(f'v_mul_u32_u24 v6, {WS_BIAS - WS_CS}, v6'); a('v_add_u32 v5, v5, v6')
    a('s_lshl_b32 s13, s3, 7'); a(f's_add_u32 s13, s13, {WS_CS}')
    a('buffer_store_dword v8, v5, s[16:19], s13 offen sc1')
    a(f's_branch {ex}')

TAB, KBUF = 0, 16384
def job_conv(a, ex):
    a.c('---- job kgen + conv')
    a(f's_load_dwordx8 s[32:39], s[0:1], {KA["A_re"]}')
    a(f's_load_dwordx8 s[40:47], s[0:1], {KA["C_re"]}')
    a(f's_load_dwordx2 s[8:9], s[0:1], {KA["ws"]}')
    dbg_srd(a, 24)
    a('v_lshlrev_b32 v1, 4, v0')
    a('v_and_b32 v2, 63, v0'); a('v_lshrrev_b32 v3, 6, v0')
    a('v_and_b32 v4, 15, v2'); a('v_lshrrev_b32 v5, 4, v2')
    a('v_readfirstlane_b32 s20, v3')
    a('v_and_b32 v16, 127, v0')
    a('s_lshl_b32 s22, s3, 7'); a('v_add_u32 v17, s22, v16'); a('v_lshlrev_b32 v17, 1, v17')
    a('s_lshl_b32 s23, s3, 1'); a('v_mov_b32 v18, s23')
    a('v_lshlrev_b32 v19, 2, v16')
    a('s_waitcnt lgkmcnt(0)')
    a('global_load_ushort v32, v17, s[32:33]'); a('global_load_ushort v33, v17, s[34:35]')
    a('global_load_ushort v38, v18, s[44:45]'); a('global_load_ushort v39, v18, s[46:47]')
    gy = a.newlabel('ka_gy'); gj = a.newlabel('ka_gj')
    noy = a.newlabel('ka_noy')
    a('s_cmp_lt_u32 s20, 2'); a(f's_cbranch_scc1 {noy}')
    a('global_load_ushort v34, v17, s[36:37]'); a('global_load_ushort v35, v17, s[38:39]')
    a('global_load_ushort v36, v17, s[40:41]'); a('global_load_ushort v37, v17, s[42:43]')
    a.label(noy)
    srd(a, 8, 8, WS_SIZE); srd(a, 24, 24, 256)
    stamp(a, 0)
    a('s_waitcnt vmcnt(0)')
    L_HI = struct.unpack('<f', struct.pack('<f', LOG2E))[0]
    L_LO = LOG2E - L_HI
    a('v_lshlrev_b32 v38, 16, v38')
    a(f'v_mul_f32 v40, {H(L_HI)}, v38'); a(f's_mov_b32 s22, {H(L_HI)}')
    a('v_fma_f32 v41, v38, s22, -v40'); a(f'v_fmac_f32 v41, {H(L_LO)}, v38')
    a('v_exp_f32 v40, v40'); a(f'v_mul_f32 v41, {H(0.6931471805599453)}, v41')
    a('v_lshlrev_b32 v32, 16, v32'); a('v_lshlrev_b32 v33, 16, v33'); a('v_lshlrev_b32 v39, 16, v39')
    a('v_fma_f32 v40, v40, v41, v40'); a('v_cvt_pk_bf16_f32 v40, v40, v40'); a('v_and_b32 v40, 0xffff0000, v40')
    a('v_mul_f32 v32, v40, v32'); a('v_mul_f32 v33, v40, v33')
    a(f'v_mul_f32 v32, {H(LOG2E)}, v32'); a(f'v_mul_f32 v33, {H(1/(2*3.141592653589793))}, v33')
    a('v_mov_b32 v7, v39')
    def cexp(d, mulc):
        if mulc != 1:
            a(f'v_mul_f32 v42, {H(float(mulc))}, v32'); a(f'v_mul_f32 v43, {H(float(mulc))}, v33'); x, y = 42, 43
        else: x, y = 32, 33
        a(f'v_exp_f32 v44, v{x}'); a(f'v_fract_f32 v45, v{y}')
        a(f'v_cos_f32 v{d}, v45'); a(f'v_sin_f32 v{d+1}, v45')
        a(f'v_mul_f32 v{d}, v44, v{d}'); a(f'v_mul_f32 v{d+1}, v44, v{d+1}')
    def cmul_l(d, x, y):
        return [f'v_pk_mul_f32 v[{d}:{d+1}], v[{x}:{x+1}], v[{y}:{y+1}] op_sel:[0,0] op_sel_hi:[0,1]',
                f'v_pk_fma_f32 v[{d}:{d+1}], v[{x}:{x+1}], v[{y}:{y+1}], v[{d}:{d+1}] op_sel:[1,1,0] op_sel_hi:[1,0,1] neg_lo:[0,1,0]']
    def put_l(row, src, t, neg=False):
        return [f'v_cvt_pk_bf16_f32 v{t}, v{src}, {"-" if neg else ""}v{src+1}', f'ds_write_b32 v19, v{t} offset:{row*KG_RS}']
    def weave(chains):
        chains = [list(c) for c in chains]
        while any(chains):
            for c in chains:
                if c: a(c.pop(0))
    a('s_cmp_ge_u32 s20, 2'); a(f's_cbranch_scc1 {gy}')
    E1, E128 = 48, 50
    cexp(E1, 1); cexp(E128, 128)
    Q = {1: E1}
    for r in range(2, 8): Q[r] = 52 + 2*(r-2)
    P = {1: E128}
    for i in range(2, 8): P[i] = 64 + 2*(i-2)
    a('v_mov_b32 v88, 0x00003f80'); a('ds_write_b32 v19, v88 offset:0')
    cq = put_l(1, E1, 80)
    for r in range(2, 8): cq += cmul_l(Q[r], Q[r-1], E1) + put_l(r, Q[r], 80)
    cp = put_l(8, E128, 81)
    for i in range(2, 8):
        cp += cmul_l(P[i], P[i-1], E128)
        cp += put_l(16 + (i-2)*4 if i < 4 else 24 + (i-4)*2, P[i], 81)
    weave([cq, cp])
    prods = [(P[1], Q[r], 8 + r) for r in range(1, 8)]
    prods += [(P[i], Q[r], 16 + (i-2)*4 + 1 + x) for i in (2, 3) for x, r in enumerate((2, 4, 6))]
    prods += [(P[i], Q[4], 24 + (i-4)*2 + 1) for i in (4, 5, 6, 7)]
    ch = [[], [], []]
    for k, (x, y, row) in enumerate(prods):
        c = k % 3
        ch[c] += cmul_l(76 + 8*c if c else 76, x, y) + put_l(row, 76 + 8*c if c else 76, 82 + c if c < 2 else 86)
    weave(ch)
    a(f's_branch {gj}')
    a.label(gy)
    for i in range(4): a(f'v_lshlrev_b32 v{34+i}, 16, v{34+i}')
    a('v_mul_f32 v34, v40, v34'); a('v_mul_f32 v35, v40, v35')
    G = [52, 54]
    a(f'v_mul_f32 v{G[0]}, v36, v34'); a(f'v_fma_f32 v{G[0]}, -v37, v35, v{G[0]}')
    a(f'v_mul_f32 v{G[0]+1}, v36, v35'); a(f'v_fma_f32 v{G[0]+1}, v37, v34, v{G[0]+1}')
    E8, E128y, P8 = 48, 50, 56
    cexp(E8, 8); cexp(E128y, 128); cexp(P8, 1024)
    cg = put_l(41, G[0], 80, neg=True)
    for j in range(1, 16): cg += cmul_l(G[j % 2], G[(j-1) % 2], E8) + put_l(41 + j, G[j % 2], 80, neg=True)
    cp = put_l(32, P8, 81)
    pc = P8
    for i in range(9, 17):
        pn = 58 + 2*(i % 2)
        cp += cmul_l(pn, pc, E128y) + put_l(32 + (i-8), pn, 81); pc = pn
    weave([cg, cp])
    a.label(gj)
    a('s_waitcnt lgkmcnt(0)')
    a('s_barrier')
    stamp(a, 1)
    a(f'v_mul_u32_u24 v16, {KG_RS}, v4'); a('v_lshl_add_u32 v16, v5, 4, v16')
    a(f's_mul_i32 s22, s20, {16*KG_RS}'); a('v_add_u32 v17, s22, v16')
    skip = a.newlabel('ka_nomfma')
    a('s_cmp_ge_u32 s20, 3'); a(f's_cbranch_scc1 {skip}')
    for s in range(8):
        a(f'ds_read_b128 v[{32+4*s}:{35+4*s}], v16 offset:{41*KG_RS + s*64}')
        a(f'ds_read_b128 v[{64+4*s}:{67+4*s}], v17 offset:{s*64}')
    for s in range(8):
        a(f's_waitcnt lgkmcnt({14 - 2*s})')
        a(f'v_mfma_f32_16x16x32_bf16 v[96:99], v[{64+4*s}:{67+4*s}], v[{32+4*s}:{35+4*s}], {"v[96:99]" if s else "0"}')
    a.label(skip)
    t1 = a.newlabel('ka_t1'); t2 = a.newlabel('ka_t2'); tj = a.newlabel('ka_tj')
    a('s_barrier')
    a('s_cmp_eq_u32 s20, 1'); a(f's_cbranch_scc1 {t1}')
    a('s_cmp_eq_u32 s20, 2'); a(f's_cbranch_scc1 {t2}')
    a('s_cmp_eq_u32 s20, 3'); a(f's_cbranch_scc1 {tj}')
    a('v_lshrrev_b32 v16, 1, v5'); a('v_lshlrev_b32 v16, 7, v16'); a('v_and_b32 v17, 1, v5'); a('v_lshl_add_u32 v16, v17, 2, v16')
    a('v_lshl_add_u32 v16, v4, 3, v16'); a('v_lshlrev_b32 v16, 2, v16')
    a('ds_write_b128 v16, v[96:99]')
    a(f's_branch {tj}')
    a.label(t1)
    a('v_lshlrev_b32 v16, 7, v5'); a('v_add_u32 v16, 256, v16'); a('v_lshlrev_b32 v17, 8, v5')
    a('v_cmp_gt_u32 vcc, 2, v5'); a('v_cndmask_b32 v16, v17, v16, vcc')
    a('v_lshl_add_u32 v16, v4, 3, v16'); a('v_lshlrev_b32 v16, 2, v16')
    for i in range(4):
        oa = 2*i*4; ob = (128*(i >> 1) + 4*(i & 1))*4
        a(f'v_mov_b32 v17, {ob}'); a(f'v_cndmask_b32 v17, v17, {oa}, vcc'); a('v_add_u32 v17, v17, v16')
        a(f'ds_write_b32 v17, v{96+i}')
    a(f's_branch {tj}')
    a.label(t2)
    a('v_lshlrev_b32 v16, 9, v5'); a('v_lshl_add_u32 v16, v4, 3, v16'); a('v_add_u32 v16, 1024, v16'); a('v_lshlrev_b32 v16, 2, v16')
    for i in range(4): a(f'ds_write_b32 v16, v{96+i} offset:{i*512}')
    a.label(tj)
    a('s_waitcnt lgkmcnt(0)')
    a('s_barrier')
    stamp(a, 2)
    fast = a.newlabel('ka_fast'); ej = a.newlabel('ka_ej')
    a('s_cmp_ge_u32 s20, 2'); a(f's_cbranch_scc1 {fast}')
    a('v_cmp_lt_u32 vcc, 31, v0'); a('v_cndmask_b32 v8, 0, 1, vcc')
    a('v_cmp_lt_u32 vcc, 63, v0'); a('v_cndmask_b32 v8, v8, 2, vcc')
    a('v_lshlrev_b32 v9, 3, v0'); a('v_lshlrev_b32 v10, v8, -1'); a('v_min_u32 v11, 1, v8')
    a('v_not_b32 v12, v10'); a('v_lshrrev_b32 v12, 1, v12')
    for e in range(8):
        t = 13 + (e % 2)
        a(f'v_add_u32 v{t}, {e}, v9'); a(f'v_bfe_u32 v{26 + e % 2}, v{t}, v8, v11'); a(f'v_add3_u32 v{t}, v{t}, v12, v{26 + e % 2}')
        a(f'v_and_b32 v{t}, v{t}, v10'); a(f'v_lshlrev_b32 v{t}, 2, v{t}')
        a(f'ds_read_b32 v{16+e}, v{t}')
    a('s_waitcnt lgkmcnt(0)')
    for e in range(4): a(f'v_cvt_pk_bf16_f32 v{36+e}, v{16+2*e}, v{17+2*e}')
    a(f's_branch {ej}')
    a.label(fast)
    a('v_lshlrev_b32 v9, 5, v0')
    a('ds_read_b32 v24, v9'); a('ds_read_b32 v25, v9 offset:32')
    a('v_and_b32 v8, 1, v0'); a('v_cmp_eq_u32 vcc, 0, v8')
    a('s_waitcnt lgkmcnt(0)')
    a('v_cvt_pk_bf16_f32 v36, v24, v24'); a('v_cvt_pk_bf16_f32 v39, v25, v25')
    a('v_cndmask_b32 v26, v25, v24, vcc')
    a('v_mov_b32 v37, v36'); a('v_cvt_pk_bf16_f32 v38, v26, v25')
    a.label(ej)
    a(f'ds_write_b128 v1, v[36:39] offset:{KBUF}')
    a('v_lshrrev_b32 v17, 2, v0'); a('v_mul_u32_u24 v17, 36864, v17'); a('v_and_b32 v18, 3, v0'); a('v_lshl_add_u32 v17, v18, 4, v17')
    a('v_lshlrev_b32 v18, 5, v0')
    a('v_lshlrev_b32 v6, 9, v3'); a('v_lshl_add_u32 v6, v4, 4, v6'); a('v_lshl_add_u32 v6, v5, 2, v6')
    a('v_lshrrev_b32 v19, 5, v6'); a('v_mul_u32_u24 v19, 36864, v19'); a('v_and_b32 v20, 31, v6'); a('v_lshl_add_u32 v19, v20, 1, v19')
    a('s_lshl_b32 s21, s3, 6'); a(f's_add_u32 s21, s21, {WS_XT}'); a(f's_add_u32 s23, s21, {8*36864}')
    a('s_lshl_b32 s13, s3, 2'); a(f's_add_u32 s13, s13, {WS_MOD}')
    a(f's_mov_b32 s14, {WS_RHO}'); a(f's_mov_b32 s15, {WS_MU}')
    a('v_mov_b32 v21, 0')
    a('s_waitcnt lgkmcnt(0)')
    a_poll(a, 24, [DBG_T, DBG_M], 20)
    stamp(a, 3)
    a('buffer_load_dwordx4 v[40:43], v17, s[8:11], s21 offen sc1')
    a('buffer_load_dwordx4 v[44:47], v18, s[8:11], s14 offen sc1')
    a('buffer_load_dwordx4 v[48:51], v18, s[8:11], s14 offen offset:16 sc1')
    a('buffer_load_dwordx4 v[52:55], v18, s[8:11], s15 offen sc1')
    a('buffer_load_dwordx4 v[56:59], v18, s[8:11], s15 offen offset:16 sc1')
    a('buffer_load_dword v62, v21, s[8:11], s13 offen sc1')
    a('buffer_load_dword v60, v21, s[8:11], s13 offen offset:2304 sc1')
    a('s_add_u32 s13, s13, 4608')
    a('buffer_load_dword v22, v21, s[8:11], s13 offen sc1')
    a('buffer_load_dwordx2 v[8:9], v19, s[8:11], s21 offen sc1')
    a('buffer_load_dwordx2 v[10:11], v19, s[8:11], s23 offen sc1')
    a('v_subrev_u32 v16, 16, v1'); a('v_max_i32 v16, 0, v16')
    a(f'ds_read_b128 v[32:35], v16 offset:{KBUF}')
    a('v_cmp_eq_u32 vcc, 0, v0')
    a('s_waitcnt lgkmcnt(0)')
    for i in range(4): a(f'v_cndmask_b32 v{32+i}, v{32+i}, 0, vcc')
    a('s_barrier')
    for i in range(4): a(f'v_mov_b32 v{64+i}, 0')
    a(f'v_mul_u32_u24 v23, {CS}, v0'); a(f'v_add_u32 v24, {HR + 4096 - 8*16}, v1')
    a('v_cmp_gt_u32 vcc, 8, v0'); a('v_cndmask_b32 v23, v24, v23, vcc')
    a('v_cmp_gt_u32 vcc, 38, v0')
    a('s_and_saveexec_b64 s[28:29], vcc')
    a('ds_write_b128 v23, v[64:67]')
    a('s_mov_b64 exec, s[28:29]')
    a('v_add_u32 v24, 16, v1')
    for c in range(8):
        off = 1 + c
        r = 32 + off//2
        if off % 2 == 0:
            if r % 2 == 0:
                a(f'ds_write_b128 v24, v[{r}:{r+3}] offset:{c*CS}')
            else:
                t = 68 + 4*((c//2) % 2)
                for i in range(4): a(f'v_mov_b32 v{t+i}, v{r+i}')
                a(f'ds_write_b128 v24, v[{t}:{t+3}] offset:{c*CS}')
        else:
            t = 76 + 4*((c//2) % 2)
            for i in range(4): a(f'v_alignbit_b32 v{t+i}, v{r+i+1}, v{r+i}, 16')
            a(f'ds_write_b128 v24, v[{t}:{t+3}] offset:{c*CS}')
    a('v_and_b32 v12, 7, v4'); a(f'v_mul_u32_u24 v12, {CS}, v12')
    a('v_and_b32 v23, 8, v4'); a('v_lshl_add_u32 v23, v5, 3, v23'); a('v_lshl_add_u32 v23, v3, 6, v23')
    a('v_lshl_add_u32 v12, v23, 1, v12')
    a('v_lshlrev_b32 v13, 4, v4'); a('v_sub_u32 v13, 240, v13'); a('v_lshl_add_u32 v13, v5, 3, v13'); a('v_lshl_add_u32 v13, v3, 6, v13')
    a(f'v_lshlrev_b32 v13, 1, v13'); a(f'v_add_u32 v13, {HR}, v13')
    a('s_waitcnt vmcnt(2)')
    stamp(a, 4)
    a('v_add_f32 v60, 1.0, v60'); a('v_cvt_pk_bf16_f32 v60, v60, v60'); a('v_and_b32 v60, 0xffff0000, v60'); a('v_mov_b32 v61, v60')
    a('v_mov_b32 v63, v62')
    for i in range(4):
        a(f'v_lshlrev_b32 v{84+2*i}, 16, v{40+i}'); a(f'v_and_b32 v{85+2*i}, 0xffff0000, v{40+i}')
    for i in range(4):
        a(f'v_pk_fma_f32 v[{84+2*i}:{85+2*i}], v[{84+2*i}:{85+2*i}], v[{44+2*i}:{45+2*i}], v[{52+2*i}:{53+2*i}] neg_lo:[0,0,1] neg_hi:[0,0,1]')
    for i in range(4):
        a(f'v_pk_fma_f32 v[{84+2*i}:{85+2*i}], v[{84+2*i}:{85+2*i}], v[60:61], v[62:63]')
    for i in range(4):
        a(f'v_cvt_pk_bf16_f32 v{92+i}, v{84+7-2*i}, v{84+6-2*i}')
    a(f'v_sub_u32 v25, {HR + 4080}, v1')
    a('ds_write_b128 v25, v[92:95]')
    a('s_waitcnt lgkmcnt(0)')
    a('s_barrier')
    stamp(a, 5)
    AF, FF, ACC = 32, 64, 96
    started = set()
    for ph in range(2):
        po = ph*64
        for m in range(8):
            a(f'ds_read_b128 v[{FF+4*m}:{FF+4*m+3}], v13 offset:{(7-m)*512 + po}')
            a(f'ds_read_b128 v[{AF+4*m}:{AF+4*m+3}], v12 offset:{m*512 + po}')
        for s_ in range(8):
            a(f's_waitcnt lgkmcnt({min(15, 14 - 2*s_)})')
            for m in range(s_+1):
                for u in range(s_+1):
                    if max(m, u) != s_: continue
                    n = m + u
                    if n > 7: continue
                    c = f'v[{ACC+4*n}:{ACC+4*n+3}]' if n in started else '0'
                    started.add(n)
                    a(f'v_mfma_f32_16x16x32_bf16 v[{ACC+4*n}:{ACC+4*n+3}], v[{AF+4*m}:{AF+4*m+3}], v[{FF+4*u}:{FF+4*u+3}], {c}')
    stamp(a, 6)
    a('v_lshlrev_b32 v16, 4, v2'); a('v_lshl_add_u32 v17, v3, 13, v16')
    a('v_lshl_add_u32 v18, v3, 11, v16')
    a('v_lshlrev_b32 v19, 1, v6'); a(f'v_sub_u32 v19, {HR + 2044*2}, v19'); a('v_subrev_u32 v20, 512, v19')
    a('s_and_b32 s28, s3, 3'); a('s_lshr_b32 s29, s3, 3'); a('s_and_b32 s29, s29, 1'); a('s_lshl_b32 s29, s29, 2'); a('s_add_u32 s28, s28, s29'); a('s_lshl_b32 s28, s28, 1')
    a('v_and_b32 v21, 7, v4'); a('v_lshlrev_b32 v21, 1, v21'); a('v_lshrrev_b32 v23, 1, v5'); a('v_add_u32 v21, v21, v23')
    a('v_xor_b32 v21, s28, v21'); a('v_lshlrev_b32 v21, 4, v21'); a('v_and_b32 v23, 1, v5'); a('v_lshl_add_u32 v21, v23, 3, v21')
    a('v_lshrrev_b32 v23, 3, v4'); a('v_lshl_add_u32 v23, v3, 2, v23')
    a(f'v_mul_u32_u24 v23, {576*256}, v23'); a('v_add_u32 v21, v21, v23')
    a('s_lshl_b32 s29, s3, 8'); a(f's_add_u32 s29, s29, {WS_X1T}'); a(f's_add_u32 s30, s29, {2*576*256}')
    a('s_barrier')
    for n in range(8):
        a(f'ds_write_b128 v17, v[{ACC+4*n}:{ACC+4*n+3}] offset:{n*1024}')
    a('s_waitcnt lgkmcnt(0)')
    a('s_barrier')
    for src in range(4):
        for j in range(2):
            a(f'ds_read_b128 v[{32+16*j+4*src}:{35+16*j+4*src}], v18 offset:{src*8192 + j*1024}')
    a('ds_read_b64 v[64:65], v19')
    a('ds_read_b64 v[66:67], v20')
    a('s_waitcnt vmcnt(0) lgkmcnt(0)')
    for j in range(2):
        b = 32 + 16*j
        for i in range(0, 4, 2):
            a(f'v_pk_add_f32 v[{b+i}:{b+i+1}], v[{b+i}:{b+i+1}], v[{b+4+i}:{b+5+i}]')
            a(f'v_pk_add_f32 v[{b+8+i}:{b+9+i}], v[{b+8+i}:{b+9+i}], v[{b+12+i}:{b+13+i}]')
        for i in range(0, 4, 2):
            a(f'v_pk_add_f32 v[{b+i}:{b+i+1}], v[{b+i}:{b+i+1}], v[{b+8+i}:{b+9+i}]')
        hr = 64 + 2*j; xr = 8 + 2*j; t = 68 + 8*j
        a(f'v_and_b32 v{t}, 0xffff0000, v{hr+1}'); a(f'v_lshlrev_b32 v{t+1}, 16, v{hr+1}')
        a(f'v_and_b32 v{t+2}, 0xffff0000, v{hr}'); a(f'v_lshlrev_b32 v{t+3}, 16, v{hr}')
        for r in range(4): a(f'v_fma_f32 v{b+r}, v{t+r}, v7, v{b+r}')
        a(f'v_lshlrev_b32 v{t+4}, 16, v{xr}'); a(f'v_and_b32 v{t+5}, 0xffff0000, v{xr}')
        a(f'v_lshlrev_b32 v{t+6}, 16, v{xr+1}'); a(f'v_and_b32 v{t+7}, 0xffff0000, v{xr+1}')
        for r in range(4): a(f'v_fma_f32 v{b+r}, v{b+r}, v22, v{t+4+r}')
        a(f'v_cvt_pk_bf16_f32 v{84+2*j}, v{b}, v{b+1}'); a(f'v_cvt_pk_bf16_f32 v{85+2*j}, v{b+2}, v{b+3}')
        a(f'buffer_store_dwordx2 v[{84+2*j}:{85+2*j}], v21, s[8:11], s{29+j} offen sc1')
    a(f's_branch {ex}')

JOBS = [('ka_mod', 108), ('ka_T', 64), ('ka_PW', 20), ('ka_conv', 576), ('ka_PW', 124, 20), ('ka_P2', 72)]
def gen_ka(a, kidx=0):
    name = 'ka_kernel'
    kstart(a, name, 119)
    n = dispatch(a, name, JOBS)
    ex = f'{name}_exit'
    fn = dict(ka_T=job_T, ka_mod=job_mod, ka_conv=job_conv, ka_PW=job_PW, ka_P2=job_P2)
    done = set()
    for job in JOBS:
        lab = job[0]
        if lab in done: continue
        done.add(lab)
        a.label(lab); fn[lab](a, ex)
    kexit(a, name, kidx)
    return dict(name=name, grid=n, block=256, lds=max(32*RSL, CONV_LDS, 576*PW_RS), vgpr=128, accum=128, sgpr=102)
```

```python
from common import *
from gen_kb import GC0, GC1, red_q, kb_tile

OPT = dict(p3wide=True, wsp_pf=False, early_w=False, paceB=3, paceC=3, vmcost=2, sc1=' sc1', gelu_at=2, st='main', g_stat=25, g_p3=26, g_w=31)
STAMPSETS = dict(
    main=dict(B0=0, Bmid=1, Bend=2, Cstart=3, Cend=4, Dpoll=5, Dend=6, Zpub=7),
    cd=dict(Cend=0, Cepi=1, Cst=2, Dld=3, Dbar=4, Dpoll=5, Dk0=6, Dend=7),
    bc=dict(Bend=0, Bpoll=1, Bz1=2, Bst=3, Cld=4, Zpub=5, Cpoll=6, Cstart=7),
    b=dict(B0=0, Bmid=1, Bgelu=2, Bg21=3, Bg25=4, Bg29=5, Bend=6, Bg33=7),
    b1=dict(B0=0, Bk2=1, Bk4=2, Bk8=3, Bk12=4, Bk16=5, Bmid=6),
)
def stp(a, nm):
    m = STAMPSETS[OPT['st']]
    if nm in m: stamp(a, m[nm])
CG_STAT, CG_W, CG_Z, CG_G = 0, 1, 2, 3

def cnt_addr(a, dst, group, idx):
    a(f's_lshl_b32 s{dst}, s{idx}, 8'); a(f's_add_u32 s{dst}, s{dst}, {WS_CNT + group*4096}')

def signal(a, group, idx):
    lab = a.newlabel('kg_sig')
    a('s_cmp_lg_u32 s20, 0'); a(f's_cbranch_scc1 {lab}')
    cnt_addr(a, 90, group, idx)
    a('v_mov_b32 v250, 1'); a('v_mov_b32 v251, 0')
    a('s_mov_b64 exec, 1')
    a('buffer_atomic_add v250, v251, s[8:11], s90 offen sc1')
    a('s_mov_b64 exec, -1')
    a.label(lab)

def poll(a, items):
    lab = a.newlabel('kg_polled')
    a('s_cmp_lg_u32 s20, 0'); a(f's_cbranch_scc1 {lab}')
    a('v_mov_b32 v251, 0')
    for group, idx in items:
        lp = a.newlabel('kg_poll'); ok = a.newlabel('kg_ok')
        cnt_addr(a, 90, group, idx)
        a('s_mov_b32 s91, 0x100000')
        a.label(lp)
        a('buffer_load_dword v250, v251, s[8:11], s90 offen sc1')
        a('s_waitcnt vmcnt(0)')
        a('v_readfirstlane_b32 s92, v250')
        a('s_sub_u32 s91, s91, 1'); a('s_cmp_eq_u32 s91, 0'); a(f's_cbranch_scc1 {ok}')
        a('s_cmp_ge_u32 s92, 16'); a(f's_cbranch_scc1 {ok}')
        a('s_sleep 1')
        a(f's_branch {lp}')
        a.label(ok)
    a.label(lab)
    a('s_barrier')

class GapQ:
    def __init__(self, a, S):
        self.a, self.S, self.q = a, S, []
        self.since = 99
        self.pace = 1
    def salu(self, text): self.q.append((1, 's', text, None))
    def valu(self, text): self.q.append((2 if ('v_exp' in text or 'v_rcp' in text) else 1, 's', text, None))
    def ds(self, text, tag): self.q.append((1, 'd', text, tag))
    def vm(self, text, tag): self.q.append((OPT['vmcost'], 'm', text, tag))
    def waitlg(self, tag): self.q.append((1, 'wl', None, tag))
    def waitvm(self, tag): self.q.append((1, 'wv', None, tag))
    def op(self, op):
        p, t, q, tag = op
        for l in p: self.salu(l)
        self.vm(t, tag)
        for l in q: self.salu(l)
    def emit(self, it):
        c, k, text, tag = it
        if k == 's': self.a(text)
        elif k == 'd': self.S.ds(text, tag)
        elif k == 'm': self.S.vmem(text, tag)
        elif k == 'wl': self.S.wait_lg(tag)
        elif k == 'wv': self.S.wait_vm(tag)
    def fill(self, n):
        self.since += 1
        while self.q and n > 0:
            c = self.q[0][0]
            if c > n and n < 2: break
            if self.q[0][1] == 'm':
                if self.since < self.pace: break
                self.since = 0
            self.emit(self.q.pop(0)); n -= c
        return n
    def flush(self):
        while self.q: self.emit(self.q.pop(0))

Z1 = 200

def phase_B(a, name):
    S = Stream(a)
    NX, NW = 4, 5
    XSLOT, WSLOT = 16384, 18432
    XR = 0; WR = NX*XSLOT; SC = WR + NW*WSLOT
    NST = 18
    a('s_mul_i32 s21, s20, 5'); a('s_lshl_b32 s22, s20, 2'); a('s_add_u32 s22, s22, 2')
    a('s_movk_i32 s23, 3072')
    a('s_cmp_lt_u32 s20, 2'); a('s_cselect_b32 s21, s21, s22')
    a('s_cselect_b32 s23, 4096, s23')
    a('s_cselect_b32 s24, 1, 0')
    a('s_lshl_b32 s21, s21, 10')
    a(f's_mul_i32 s26, s17, {36*9216}'); a(f's_add_u32 s26, s26, {WS_W1T}'); a('s_add_u32 s26, s26, s21')
    a('s_add_u32 s27, s21, s23'); a('s_cmp_eq_u32 s24, 1'); a(f's_cselect_b32 s27, s27, {SC + 4*576}')
    a(f's_mul_i32 s28, s16, {576*256}'); a(f's_add_u32 s28, s28, {WS_X1T}'); a('s_lshl_b32 s29, s20, 12'); a('s_add_u32 s28, s28, s29')
    a('s_mul_i32 s33, s17, 576')
    a('s_cmp_lt_u32 s20, 2'); a(f's_cselect_b32 s34, {2304*4}, 0'); a('s_add_u32 s33, s33, s34')
    a('s_and_b32 s34, s20, 1'); a(f's_mul_i32 s34, s34, {WS_BIAS - WS_CS}'); a('s_add_u32 s33, s33, s34'); a(f's_add_u32 s33, s33, {WS_CS}')
    a('s_mul_i32 s34, s20, 576')
    a('s_waitcnt lgkmcnt(0)')
    srd(a, 8, 8, WS_SIZE)
    def lds_base(addr):
        if addr < 0x10000: return 'v3', addr
        if addr < 0x20000: return 'v4', addr - 0x10000
        return 'v5', addr - 0x20000
    def wslot(n):
        if not OPT['early_w'] or n <= 13: return WR + (n % NW)*WSLOT
        if n == 14: return XR + 32768
        return WR + ((n - 1) % NW)*WSLOT
    def dma_W(n):
        slot = wslot(n)
        ops = []
        ops.append(([f's_add_u32 m0, s21, {slot}', f's_add_u32 s30, s26, {n*WSLOT}'], 'buffer_load_dwordx4 v3, s[8:11], s30 offen lds', []))
        for k in range(1, 4):
            ops.append(([], f'buffer_load_dwordx4 v3, s[8:11], s30 offen offset:{k*1024} lds', []))
        ops.append(([f's_mul_i32 s31, s24, {slot}', 's_add_u32 m0, s27, s31', 's_add_u32 s31, s30, s23'], 'buffer_load_dwordx4 v3, s[8:11], s31 offen lds', []))
        return [(p, t, q, ('W', n)) for p, t, q in ops]
    def dma_X(m):
        slot = XR + (m % NX)*XSLOT
        ops = [([f's_add_u32 m0, s29, {slot}', f's_add_u32 s32, s28, {m*XSLOT}'], 'buffer_load_dwordx4 v3, s[8:11], s32 offen lds', [])]
        for k in range(1, 4):
            ops.append(([], f'buffer_load_dwordx4 v3, s[8:11], s32 offen offset:{k*1024} lds', []))
        return [(p, t, q, ('X', m)) for p, t, q in ops]
    def issue(op):
        p, t, q, tag = op
        for l in p: a(l)
        S.vmem(t, tag)
        for l in q: a(l)
    for op in dma_X(0): issue(op)
    for op in dma_W(0): issue(op)
    a(f's_add_u32 m0, s34, {SC}')
    a('s_mov_b32 exec_hi, 0xf')
    S.vmem('buffer_load_dwordx4 v3, s[8:11], s33 offen lds', 'CB')
    a('s_mov_b64 exec, -1')
    for op in dma_X(1): issue(op)
    for op in dma_W(1): issue(op)
    late = []
    for n in range(2, NW-1):
        if n < NX-1: late += dma_X(n)
        late += dma_W(n)
    srd(a, 4, 4, 2048*4096)
    a('v_lshrrev_b32 v10, 2, v6'); a('v_and_b32 v11, 3, v1')
    a('v_and_b32 v12, 1, v7'); a('v_lshl_add_u32 v12, v12, 2, v10'); a('v_lshlrev_b32 v12, 1, v12')
    a('v_lshl_add_u32 v13, v7, 3, v10'); a('v_lshlrev_b32 v13, 8, v13')
    a('v_and_b32 v14, 1, v11'); a('v_lshl_add_u32 v13, v14, 3, v13')
    a('v_lshrrev_b32 v14, 1, v11'); a('v_lshl_add_u32 v14, v2, 2, v14')
    a('v_xor_b32 v15, v14, v12'); a('v_lshl_add_u32 v8, v15, 4, v13')
    a('v_add_u32 v14, 2, v14'); a('v_xor_b32 v15, v14, v12'); a('v_lshl_add_u32 v9, v15, 4, v13')
    if OPT['wsp_pf']:
        a('s_lshl_b32 s38, s16, 19'); a('s_lshl_b32 s39, s20, 17'); a('s_add_u32 s38, s38, s39'); a('s_lshl_b32 s40, s17, 8'); a('s_add_u32 s38, s38, s40')
        a('v_lshrrev_b32 v16, 1, v1'); a('v_lshlrev_b32 v16, 12, v16'); a('v_and_b32 v17, 1, v1'); a('v_lshl_add_u32 v16, v17, 7, v16')
        S.vmem('buffer_load_dword v253, v16, s[4:7], s38 offen', 'WPF')
    P3R = 168
    if OPT['p3wide']:
        a('v_lshrrev_b32 v16, 4, v1'); a('v_xor_b32 v17, v6, v16'); a('v_lshlrev_b32 v17, 4, v17'); a('v_lshl_add_u32 v16, v16, 12, v17')
    else:
        a('v_lshrrev_b32 v16, 2, v1'); a('v_lshlrev_b32 v16, 12, v16'); a('v_and_b32 v17, 3, v1'); a('v_lshl_add_u32 v16, v17, 4, v16')
    a('s_lshl_b32 s38, s16, 19'); a('s_lshl_b32 s39, s20, 17'); a('s_add_u32 s38, s38, s39'); a('s_lshl_b32 s40, s17, 8'); a('s_add_u32 s38, s38, s40')
    a('s_lshl_b32 s39, s16, 2'); a('s_add_u32 s39, s39, s20'); a('s_lshl_b32 s39, s39, 17'); a('s_lshl_b32 s40, s17, 13'); a('s_add_u32 s39, s39, s40'); a(f's_add_u32 s39, s39, {WS_WSP}')
    a('s_lshl_b32 s54, s20, 13')
    if OPT['p3wide']:
        a('v_xor_b32 v17, v7, v6'); a('v_lshlrev_b32 v17, 4, v17'); a('v_lshl_add_u32 v17, v6, 8, v17'); a('v_add_u32 v17, s54, v17')
    else:
        a('v_lshlrev_b32 v17, 6, v6'); a('v_lshl_add_u32 v17, v7, 4, v17'); a('v_add_u32 v17, s54, v17')
    XF, WF, ACC1 = 0, 144, 180
    ACC2 = 96
    ONE, GR, ONES = 20, 28, 36
    for i in range(4): a(f'v_mov_b32 v{ONES+i}, 0x3f803f80')
    def rdW(g, ii):
        n, u = g >> 1, g & 1
        b, o = lds_base(wslot(n) + u*9216 + ii*1024)
        S.ds(f'ds_read_b128 a[{WF+4*ii}:{WF+4*ii+3}], {b} offset:{o}', ('w', g, ii))
    def rdX(Sx):
        m, u = Sx >> 1, Sx & 1
        base = XR + (m % NX)*XSLOT + u*8192
        ops = []
        for jj in range(2):
            for h in range(2):
                r = XF + (Sx*2 + jj)*4 + 2*h
                ops.append((f'ds_read_b64_tr_b16 a[{r}:{r+1}], v{8+jj} offset:{base + h*1024}', ('x', Sx)))
        return ops
    RM = 40; CBR = 44; T = 60; SA, QA = 76, 80
    a(f'v_mov_b32 v84, {H(GC0)}'); a(f'v_mov_b32 v85, {H(GC1)}')
    a('s_mov_b32 s46, 1.0'); a('s_mov_b32 s47, 1.0')
    for i in range(8): a(f'v_mov_b32 v{SA+i}, 0')
    a(f'v_lshlrev_b32 v18, 4, v7'); a(f'v_add_u32 v18, {SC - 0x20000}, v18'); a('v_add_u32 v18, 0x20000, v18')
    S.wait_vm(('X', 0), ('W', 0), 'CB')
    a('s_barrier')
    stp(a, 'B0')
    for t, tag in rdX(0): S.ds(t, tag)
    for ii in range(9): rdW(0, ii)
    def cb_reads(ii, off):
        cb = CBR + 8*(ii % 2)
        S.ds(f'ds_read_b128 v[{cb}:{cb+3}], v18 offset:{off + ii*64}', ('cb', off, ii))
        S.ds(f'ds_read_b128 v[{cb+4}:{cb+7}], v18 offset:{off + 576 + ii*64}', ('cb', off, ii))
    def fold_ops(src, jj, cb, t):
        rm = RM + 2*jj
        ops = []
        for p in range(2):
            ops.append(f'v_pk_fma_f32 v[{t+2*p}:{t+2*p+1}], v[{rm}:{rm+1}], v[{cb+2*p}:{cb+2*p+1}], v[{cb+4+2*p}:{cb+5+2*p}] op_sel:[1,0,0] op_sel_hi:[1,1,1] neg_lo:[1,0,0] neg_hi:[1,0,0]')
        for p in range(2):
            ops.append(f'v_pk_fma_f32 v[{src+2*p}:{src+2*p+1}], v[{src+2*p}:{src+2*p+1}], v[{rm}:{rm+1}], v[{t+2*p}:{t+2*p+1}] op_sel:[0,0,0] op_sel_hi:[1,0,1]')
        return ops
    def gelu_ops(src, t):
        ops = []
        for p in range(2): ops.append(f'v_pk_mul_f32 v[{t+2*p}:{t+2*p+1}], v[{src+2*p}:{src+2*p+1}], v[{src+2*p}:{src+2*p+1}]')
        for p in range(2): ops.append(f'v_pk_fma_f32 v[{t+2*p}:{t+2*p+1}], v[{t+2*p}:{t+2*p+1}], v[84:85], v[84:85] op_sel:[0,1,0] op_sel_hi:[1,1,0]')
        for p in range(2): ops.append(f'v_pk_mul_f32 v[{t+2*p}:{t+2*p+1}], v[{t+2*p}:{t+2*p+1}], v[{src+2*p}:{src+2*p+1}]')
        for k in range(4): ops.append(f'v_exp_f32 v{t+k}, v{t+k}')
        for p in range(2): ops.append(f'v_pk_add_f32 v[{t+2*p}:{t+2*p+1}], v[{t+2*p}:{t+2*p+1}], s[46:47]')
        for k in range(4): ops.append(f'v_rcp_f32 v{t+k}, v{t+k}')
        for p in range(2): ops.append(f'v_pk_mul_f32 v[{src+2*p}:{src+2*p+1}], v[{src+2*p}:{src+2*p+1}], v[{t+2*p}:{t+2*p+1}]')
        return ops
    def mid_section():
        a('s_barrier')
        if OPT['early_w']:
            for op in dma_W(13) + dma_W(14): issue(op)
        a('s_nop 7')
        a('v_and_b32 v60, 3, v6'); a('v_lshrrev_b32 v61, 2, v6')
        a('v_cmp_eq_u32 s[40:41], 1, v60'); a('v_cmp_eq_u32 s[42:43], 2, v60'); a('v_cmp_eq_u32 s[44:45], 3, v60'); a('v_cmp_eq_u32 s[48:49], v61, v7')
        for jj in range(2):
            g_ = GR + 4*jj
            a(f'v_cndmask_b32 v{g_}, v{g_}, v{g_+1}, s[40:41]'); a(f'v_cndmask_b32 v{g_}, v{g_}, v{g_+2}, s[42:43]'); a(f'v_cndmask_b32 v{g_}, v{g_}, v{g_+3}, s[44:45]')
            a(f'v_cndmask_b32 v{g_}, 0, v{g_}, s[48:49]')
        cb_reads(0, 0)
        for jj in range(2): red_q(a, GR + 4*jj, 62 + jj)
        for jj in range(2):
            sm, sq = ONE + 4*jj, GR + 4*jj
            a(f'v_mul_f32 v{sm}, {H(1/576)}, v{sm}'); a(f'v_mul_f32 v{sq}, {H(1/576)}, v{sq}')
            a(f'v_fma_f32 v{sq}, -v{sm}, v{sm}, v{sq}'); a(f'v_max_f32 v{sq}, 0, v{sq}'); a(f'v_add_f32 v{sq}, {H(1e-5)}, v{sq}')
            a(f'v_rsq_f32 v{RM+2*jj}, v{sq}'); a(f'v_mul_f32 v{RM+2*jj+1}, v{sm}, v{RM+2*jj}')
        for ii in range(9):
            if ii + 1 < 9: cb_reads(ii+1, 0)
            if ii < 8:
                if OPT['p3wide']:
                    a(f'v_xor_b32 v19, {(ii & 3)*64}, v16')
                    a(f's_add_u32 m0, s54, {ii*1024}'); a(f's_add_u32 s55, s38, {ii*4*4096}')
                    S.vmem('buffer_load_dwordx4 v19, s[4:7], s55 offen lds', 'P3')
                else:
                    jj_, u_ = ii >> 2, ii & 3
                    a(f's_add_u32 m0, s54, {ii*1024}'); a(f's_add_u32 s55, s38, {jj_*16*4096 + u_*64}')
                    S.vmem('buffer_load_dwordx4 v16, s[4:7], s55 offen lds', 'P3')
            S.wait_lg(('cb', 0, ii))
            cb = CBR + 8*(ii % 2)
            chains = []
            for jj in range(2):
                src = ACC2 + (ii*2 + jj)*4; t = T + 8*jj
                ops = fold_ops(src, jj, cb, t) + gelu_ops(src, t + 4)
                for p in range(2):
                    ops.append(f'v_pk_add_f32 v[{SA+2*jj}:{SA+2*jj+1}], v[{SA+2*jj}:{SA+2*jj+1}], v[{src+2*p}:{src+2*p+1}]')
                    ops.append(f'v_pk_fma_f32 v[{QA+2*jj}:{QA+2*jj+1}], v[{src+2*p}:{src+2*p+1}], v[{src+2*p}:{src+2*p+1}], v[{QA+2*jj}:{QA+2*jj+1}]')
                chains.append(ops)
            for x, y in zip(*chains): a(x); a(y)
        for jj in range(2):
            a(f'v_add_f32 v{SA+2*jj}, v{SA+2*jj}, v{SA+2*jj+1}'); a(f'v_add_f32 v{QA+2*jj}, v{QA+2*jj}, v{QA+2*jj+1}')
        for r in (SA, SA+2, QA, QA+2): red_q(a, r, T)
        a(f'v_mov_b32 v{SA+1}, v{QA}'); a(f'v_mov_b32 v{SA+3}, v{QA+2}')
        a('v_lshl_add_u32 v60, v2, 5, v6'); a('v_lshlrev_b32 v60, 7, v60')
        a(f's_lshl_b32 s48, s16, 14'); a('s_lshl_b32 s49, s17, 3'); a('s_add_u32 s48, s48, s49'); a(f's_add_u32 s48, s48, {WS_Z2ST}')
        a('s_mov_b64 exec, 0xffff')
        S.vmem(f'buffer_store_dwordx2 v[{SA}:{SA+1}], v60, s[8:11], s48 offen sc1', 'pub')
        S.vmem(f'buffer_store_dwordx2 v[{SA+2}:{SA+3}], v60, s[8:11], s48 offen offset:2048 sc1', 'pub')
        a('s_mov_b64 exec, -1')
    NG = 36
    Q = GapQ(a, S)
    Q.pace = OPT['paceB']
    for op in late: Q.op(op)
    sig_stat = sig_w = False
    for g in range(NG):
        n, u = g >> 1, g & 1
        pass2 = g >= 18
        Sx = g if not pass2 else g - 18
        if g == 18:
            Q.flush()
            stp(a, 'Bmid')
            mid_section()
            stp(a, 'Bgelu')
        if u == 1 and n + 1 < NST:
            tags = [('W', n+1)]
            if n + 1 < 9: tags.append(('X', n+1))
            s1 = pass2 and not sig_stat and g >= OPT['g_stat']
            s2_ = pass2 and not sig_w and g >= OPT['g_w'] and not OPT['early_w']
            if s1: tags.append('pub')
            if s2_: tags.append(('P3s', 7))
            while any(it[1] == 'm' and it[3] in tags for it in Q.q): Q.emit(Q.q.pop(0))
            S.wait_vm(*tags)
            if g == 33:
                poll(a, [(CG_STAT, 16)])
                a('v_lshl_add_u32 v60, v2, 5, v6'); a('v_lshlrev_b32 v60, 7, v60'); a('v_lshl_add_u32 v60, v7, 5, v60')
                a(f's_lshl_b32 s48, s16, 14'); a(f's_add_u32 s48, s48, {WS_Z2ST}')
                for jj in range(2):
                    S.vmem(f'buffer_load_dwordx4 v[{20+8*jj}:{23+8*jj}], v60, s[8:11], s48 offen offset:{jj*2048} sc1', 'part')
                    S.vmem(f'buffer_load_dwordx4 v[{24+8*jj}:{27+8*jj}], v60, s[8:11], s48 offen offset:{jj*2048+16} sc1', 'part')
            else:
                a('s_barrier')
            if s1: signal(a, CG_STAT, 16); sig_stat = True
            if s2_: signal(a, CG_W, 16); sig_w = True
            if n + NX - 1 < 9:
                for op in dma_X(n + NX - 1): Q.op(op)
            if OPT['early_w'] and n >= 9:
                if 10 <= n <= 12:
                    for op in dma_W(n + 5): Q.op(op)
            elif n + NW - 1 < NST:
                for op in dma_W(n + NW - 1): Q.op(op)
        xq = rdX(Sx + 1) if (not pass2 and Sx + 1 < 18) else []
        st = []
        if not pass2:
            S.wait_lg(('x', Sx))
            xf = [XF + (Sx*2 + jj)*4 for jj in range(2)]
            st = [f'v_mfma_f32_16x16x32_bf16 v[{ONE+4*jj}:{ONE+4*jj+3}], v[{ONES}:{ONES+3}], a[{xf[jj]}:{xf[jj]+3}], ' + (f'v[{ONE+4*jj}:{ONE+4*jj+3}]' if g else '0') for jj in range(2)]
            st += [f'v_mfma_f32_16x16x32_bf16 v[{GR+4*jj}:{GR+4*jj+3}], a[{xf[jj]}:{xf[jj]+3}], a[{xf[jj]}:{xf[jj]+3}], ' + (f'v[{GR+4*jj}:{GR+4*jj+3}]' if g else '0') for jj in range(2)]
        if g in (2, 4, 8, 12, 16, 21, 25, 29, 33): stp(a, {2: 'Bk2', 4: 'Bk4', 8: 'Bk8', 12: 'Bk12', 16: 'Bk16', 21: 'Bg21', 25: 'Bg25', 29: 'Bg29', 33: 'Bg33'}[g])
        if g == OPT['g_p3']:
            Q.waitvm('P3')
            for i in range(8):
                if OPT['p3wide']:
                    Q.valu(f'v_xor_b32 v19, {(i & 3)*64}, v17')
                    Q.ds(f'ds_read_b128 v[{P3R+4*i}:{P3R+4*i+3}], v19 offset:{(i >> 2)*4096}', ('p3r', i))
                else:
                    Q.ds(f'ds_read_b128 v[{P3R+4*i}:{P3R+4*i+3}], v17 offset:{i*1024}', ('p3r', i))
            for i in range(8):
                Q.waitlg(('p3r', i))
                Q.salu(f's_add_u32 s40, s39, {(i & 3)*2048 + (i >> 2)*1024}')
                Q.vm(f'buffer_store_dwordx4 v[{P3R+4*i}:{P3R+4*i+3}], v3, s[8:11], s40 offen sc1', ('P3s', i))
        for ii in range(9):
            if ii % 3 == 0: S.wait_lg(('w', g, min(ii + 2, 8)))
            for jj in range(2):
                xr = XF + (Sx*2 + jj)*4
                if not pass2: acc = f'v[{ACC2+(ii*2+jj)*4}:{ACC2+(ii*2+jj)*4+3}]'
                else: acc = f'a[{ACC1+(ii*2+jj)*4}:{ACC1+(ii*2+jj)*4+3}]'
                a(f'v_mfma_f32_16x16x32_bf16 {acc}, a[{WF+4*ii}:{WF+4*ii+3}], a[{xr}:{xr+3}], {acc if g not in (0, 18) else 0}')
                if jj == 0:
                    if xq:
                        t, tag = xq.pop(0); S.ds(t, tag); Q.fill(1)
                    else: Q.fill(2)
            if g + 1 < NG: rdW(g + 1, ii)
            if st and ii % 2 == 1:
                Q.fill(1)
                a(st.pop(0)); Q.fill(2)
            elif (ii + 1) % 3 != 0: Q.fill(1)
        assert not xq and not st
    Q.flush()
    assert sig_stat
    stp(a, 'Bend')
    a('s_barrier')
    RM2 = 168
    S.wait_vm('part')
    for jj in range(2):
        b = 20 + 8*jj
        a(f'v_pk_add_f32 v[{b}:{b+1}], v[{b}:{b+1}], v[{b+2}:{b+3}]'); a(f'v_pk_add_f32 v[{b+4}:{b+5}], v[{b+4}:{b+5}], v[{b+6}:{b+7}]')
        a(f'v_pk_add_f32 v[{b}:{b+1}], v[{b}:{b+1}], v[{b+4}:{b+5}]')
    RS = 304
    a(f'v_mul_u32_u24 v60, {RS}, v6'); a('v_lshl_add_u32 v60, v7, 3, v60'); a(f'v_mul_u32_u24 v61, {32*RS}, v2'); a(f'v_add_u32 v61, {WR}, v61'); a('v_add_u32 v60, v60, v61')
    for r in (20, 21, 28, 29): red_q(a, r, T + 4)
    a('v_lshrrev_b32 v62, 2, v6'); a('v_lshl_add_u32 v62, v7, 3, v62'); a(f'v_mul_u32_u24 v62, {RS}, v62'); a('v_and_b32 v63, 3, v1'); a('v_lshl_add_u32 v62, v63, 3, v62'); a('v_add_u32 v62, v62, v61')
    for jj in range(2):
        b = 20 + 8*jj
        a(f'v_mul_f32 v{b}, {H(1/2304)}, v{b}'); a(f'v_mul_f32 v{b+1}, {H(1/2304)}, v{b+1}')
        a(f'v_fma_f32 v{b+1}, -v{b}, v{b}, v{b+1}'); a(f'v_max_f32 v{b+1}, 0, v{b+1}'); a(f'v_add_f32 v{b+1}, {H(1e-5)}, v{b+1}')
        a(f'v_rsq_f32 v{RM2+2*jj}, v{b+1}'); a(f'v_mul_f32 v{RM2+2*jj+1}, v{b}, v{RM2+2*jj}')
    stp(a, 'Bpoll')
    for ii in range(9):
        for jj in range(2):
            src = ACC2 + (ii*2 + jj)*4; rm = RM2 + 2*jj
            for p in range(2):
                a(f'v_pk_fma_f32 v[{src+2*p}:{src+2*p+1}], v[{src+2*p}:{src+2*p+1}], v[{rm}:{rm+1}], v[{rm}:{rm+1}] op_sel:[0,0,1] op_sel_hi:[1,0,1] neg_lo:[0,0,1] neg_hi:[0,0,1]')
        for jj in range(2):
            src = ACC2 + (ii*2 + jj)*4
            a(f'v_cvt_pk_bf16_f32 v{src}, v{src}, v{src+1}'); a(f'v_cvt_pk_bf16_f32 v{src+1}, v{src+2}, v{src+3}')
        for jj in range(2):
            src = ACC2 + (ii*2 + jj)*4
            S.ds(f'ds_write_b64 v60, v[{src}:{src+1}] offset:{jj*16*RS + ii*32}', 'tw')
    S.wait_lg_all()
    for ii in range(9):
        r = ACC2 + 4*ii
        S.ds(f'ds_read_b64_tr_b16 v[{r}:{r+1}], v62 offset:{ii*32}', ('tr', ii))
        S.ds(f'ds_read_b64_tr_b16 v[{r+2}:{r+3}], v62 offset:{4*RS + ii*32}', ('tr', ii))
    a('s_lshl_b32 s50, s17, 6'); a('s_lshl_b32 s51, s16, 2'); a('s_add_u32 s50, s50, s51'); a('s_add_u32 s50, s50, s20')
    a('s_mul_i32 s50, s50, 9216'); a(f's_add_u32 s50, s50, {WS_Z2T}')
    for ii in range(9):
        r = ACC2 + 4*ii
        S.wait_lg(('tr', ii))
        a(f's_add_u32 s51, s50, {ii*1024}')
        a(f'buffer_store_dwordx4 v[{r}:{r+3}], v3, s[8:11], s51 offen sc1')
    stp(a, 'Bst')
    cb_reads(0, 1152)
    for ii in range(9):
        if ii + 1 < 9: cb_reads(ii+1, 1152)
        for jj in range(2):
            for k in range(4): a(f'v_accvgpr_read_b32 v{88+4*jj+k}, a{ACC1+(ii*2+jj)*4+k}')
        S.wait_lg(('cb', 1152, ii))
        cb = CBR + 8*(ii % 2)
        for x, y in zip(fold_ops(88, 0, cb, T), fold_ops(92, 1, cb, T+8)):
            a(x); a(y)
        z = Z1 + 4*ii
        a(f'v_cvt_pk_bf16_f32 v{z}, v88, v89'); a(f'v_cvt_pk_bf16_f32 v{z+1}, v90, v91')
        a(f'v_cvt_pk_bf16_f32 v{z+2}, v92, v93'); a(f'v_cvt_pk_bf16_f32 v{z+3}, v94, v95')
    stp(a, 'Bz1')

def phase_C(a, name):
    S = Stream(a)
    SLOT, NSL, NST = 36864, 4, 16
    sc = OPT['sc1']
    a(f's_load_dwordx2 s[4:5], s[0:1], {KA["b_sp"]}')
    a(f's_mul_i32 s34, s17, {64*9216}'); a(f's_add_u32 s34, s34, {WS_Z2T}')
    a('s_mul_i32 s31, s20, 9216')
    a('s_add_u32 s24, s34, s31')
    a('s_lshl_b32 s25, s16, 2'); a('s_add_u32 s25, s25, s20'); a('s_lshl_b32 s25, s25, 17'); a(f's_add_u32 s25, s25, {WS_WSP}')
    IF = 12; ACC = 48; BS = 156; T = 158; JF = 0
    def lds_base(addr):
        if addr < 0x10000: return 'v3', addr
        if addr < 0x20000: return 'v4', addr - 0x10000
        return 'v5', addr - 0x20000
    def jreg(n, u, jj): return JF + (((n % 4)*4 + u)*2 + jj)*4
    def zloads(n):
        slot = (n % NSL)*SLOT; tag = ('D', n); d = []
        for p in range(9):
            pre = [f's_add_u32 m0, s31, {slot+p*1024}', f's_add_u32 s26, s24, {n*4*9216 + p*1024}'] if p % 4 == 0 else []
            o = f' offset:{(p%4)*1024}' if p % 4 else ''
            d.append((pre, f'buffer_load_dwordx4 v3, s[8:11], s26 offen{o}{sc} lds', [], tag))
        return d
    def wloads(n):
        tag = ('D', n); j = []
        for x in range(8):
            pre = [f's_add_u32 s27, s25, {n*8192 + x*1024}'] if x % 4 == 0 else []
            r = jreg(n, x//2, x % 2)
            o = f' offset:{(x%4)*1024}' if x % 4 else ''
            j.append((pre, f'buffer_load_dwordx4 a[{r}:{r+3}], v3, s[8:11], s27 offen{o}{sc}', [], tag))
        return j
    def loads(n):
        d = zloads(n); j = wloads(n); out = []
        while d or j:
            if d: out.append(d.pop(0))
            if j: out.append(j.pop(0))
        return out
    def issue(op):
        p, t, q, tag = op
        for l in p: a(l)
        S.vmem(t, tag)
        for l in q: a(l)
    a('v_lshlrev_b32 v8, 1, v6')
    a('s_waitcnt vmcnt(0) lgkmcnt(0)')
    a('s_barrier')
    stp(a, 'Zpub')
    signal(a, CG_Z, 17)
    if OPT['early_w']: signal(a, CG_W, 16)
    srd(a, 4, 4, 2048*2)
    a('s_lshl_b32 s43, s16, 8'); a('s_lshl_b32 s44, s20, 6'); a('s_add_u32 s43, s43, s44')
    S.vmem(f'buffer_load_ushort v{BS}, v8, s[4:7], s43 offen', 'BS')
    S.vmem(f'buffer_load_ushort v{BS+1}, v8, s[4:7], s43 offen offset:32', 'BS')
    if OPT['early_w']:
        stp(a, 'Cld')
        poll(a, [(CG_W, 16), (CG_Z, 17)])
        stp(a, 'Cpoll')
        for n in range(2):
            for op in loads(n): issue(op)
    else:
        poll(a, [(CG_W, 16)])
        for n in range(2):
            for op in wloads(n): issue(op)
        stp(a, 'Cld')
        poll(a, [(CG_Z, 17)])
        stp(a, 'Cpoll')
        for op in zloads(0): issue(op)
        for op in zloads(1): issue(op)
    late = loads(2)
    def rdI(g, ii):
        n, u = g >> 2, g & 3
        b, o = lds_base((n % NSL)*SLOT + u*9216 + ii*1024)
        S.ds(f'ds_read_b128 v[{IF+4*ii}:{IF+4*ii+3}], {b} offset:{o}', ('i', g, ii))
    S.wait_vm(('D', 0))
    a('s_barrier')
    stp(a, 'Cstart')
    for ii in range(9): rdI(0, ii)
    a(f's_mov_b32 s53, {H(GC1)}'); a(f'v_mov_b32 v{T+20}, {H(GC0)}')
    def gelu_list():
        ops = []
        for k0 in range(0, 36, 2):
            regs = [Z1 + k0, Z1 + k0 + 1]
            x = [T + 0, T + 1, T + 2, T + 3]; t = [T + 4, T + 5, T + 6, T + 7]
            if (k0//2) % 2: x = [v + 8 for v in x]; t = [v + 8 for v in t]
            ops += [f'v_lshlrev_b32 v{x[0]}, 16, v{regs[0]}', f'v_and_b32 v{x[1]}, 0xffff0000, v{regs[0]}', f'v_lshlrev_b32 v{x[2]}, 16, v{regs[1]}', f'v_and_b32 v{x[3]}, 0xffff0000, v{regs[1]}']
            ops += [f'v_mul_f32 v{t[i]}, v{x[i]}, v{x[i]}' for i in range(4)]
            ops += [f'v_fma_f32 v{t[i]}, v{t[i]}, s53, v{T+20}' for i in range(4)]
            ops += [f'v_mul_f32 v{t[i]}, v{t[i]}, v{x[i]}' for i in range(4)]
            ops += [f'v_exp_f32 v{t[i]}, v{t[i]}' for i in range(4)]
            ops += [f'v_add_f32 v{t[i]}, 1.0, v{t[i]}' for i in range(4)]
            ops += [f'v_rcp_f32 v{t[i]}, v{t[i]}' for i in range(4)]
            ops += [f'v_mul_f32 v{x[i]}, v{x[i]}, v{t[i]}' for i in range(4)]
            ops += [f'v_cvt_pk_bf16_f32 v{regs[0]}, v{x[0]}, v{x[1]}', f'v_cvt_pk_bf16_f32 v{regs[1]}, v{x[2]}, v{x[3]}']
        return ops
    NG = 4*NST
    Q = GapQ(a, S)
    V = GapQ(a, S)
    for op in late: Q.op(op)
    Q.pace = OPT['paceC']
    def fill(n):
        n = Q.fill(n)
        if n > 0: V.fill(n)
    for g in range(NG):
        n, u = g >> 2, g & 3
        if u == 3 and n + 1 < NST:
            while any(it[1] == 'm' and it[3] == ('D', n+1) for it in Q.q): Q.emit(Q.q.pop(0))
            S.wait_vm(('D', n+1))
            a('s_barrier')
            if n + NSL - 1 < NST:
                for op in loads(n + NSL - 1): Q.op(op)
        if g == OPT['gelu_at']:
            for t in gelu_list(): V.valu(t)
        for ii in range(9):
            if ii % 3 == 0: S.wait_lg(('i', g, min(ii + 2, 8)))
            for jj in range(2):
                ac = ACC + (ii*2+jj)*4; r = jreg(n, u, jj)
                a(f'v_mfma_f32_16x16x32_bf16 v[{ac}:{ac+3}], v[{IF+ii*4}:{IF+ii*4+3}], a[{r}:{r+3}], ' + (f'v[{ac}:{ac+3}]' if g else '0'))
                if jj == 0: fill(2)
            if g + 1 < NG: rdI(g + 1, ii)
            if (ii + 1) % 3 != 0: fill(1)
    Q.flush(); V.flush()
    stp(a, 'Cend')
    a(f'v_lshlrev_b32 v{BS}, 16, v{BS}'); a(f'v_lshlrev_b32 v{BS+1}, 16, v{BS+1}')
    a('s_lshl_b32 s40, s16, 1'); a('s_lshr_b32 s41, s20, 1'); a('s_add_u32 s40, s40, s41'); a(f's_mul_i32 s40, s40, {72*4096}')
    a('s_and_b32 s41, s20, 1'); a('s_lshl_b32 s41, s41, 11'); a('s_add_u32 s40, s40, s41'); a(f's_add_u32 s40, s40, {WS_ZG}')
    a('s_mul_i32 s41, s17, 9')
    a('s_lshr_b32 s42, s41, 1'); a('s_lshl_b32 s42, s42, 12'); a('s_add_u32 s40, s40, s42')
    def epi(ii):
        for jj in range(2):
            z = Z1 + 4*ii + 2*jj; x = T + 4*jj
            a(f'v_lshlrev_b32 v{x}, 16, v{z}'); a(f'v_and_b32 v{x+1}, 0xffff0000, v{z}'); a(f'v_lshlrev_b32 v{x+2}, 16, v{z+1}'); a(f'v_and_b32 v{x+3}, 0xffff0000, v{z+1}')
        for jj in range(2):
            ac = ACC + (ii*2+jj)*4
            for p in range(2):
                a(f'v_pk_add_f32 v[{ac+2*p}:{ac+2*p+1}], v[{ac+2*p}:{ac+2*p+1}], v[{BS}:{BS+1}] op_sel:[0,{jj}] op_sel_hi:[1,{jj}]')
        for jj in range(2):
            ac = ACC + (ii*2+jj)*4; x = T + 4*jj
            for p in range(2):
                a(f'v_pk_mul_f32 v[{ac+2*p}:{ac+2*p+1}], v[{ac+2*p}:{ac+2*p+1}], v[{x+2*p}:{x+2*p+1}]')
        for jj in range(2):
            ac = ACC + (ii*2+jj)*4
            d = IF + jj*18 + 2*ii
            a(f'v_cvt_pk_bf16_f32 v{d}, v{ac}, v{ac+1}'); a(f'v_cvt_pk_bf16_f32 v{d+1}, v{ac+2}, v{ac+3}')
    a('v_lshlrev_b32 v9, 3, v1')
    odd = a.newlabel('kg_odd'); join = a.newlabel('kg_join')
    a('s_bitcmp1_b32 s17, 0'); a(f's_cbranch_scc1 {odd}')
    for par in range(2):
        if par == 1: a.label(odd)
        ii = 0
        while ii < 9:
            G = par + ii
            srel = G >> 1
            pair = (G % 2 == 0 and ii + 1 < 9)
            epi(ii)
            if pair: epi(ii + 1)
            for jj in range(2):
                d = IF + jj*18 + 2*ii
                if pair:
                    a(f's_add_u32 s43, s40, {srel*4096 + jj*1024}')
                    a(f'buffer_store_dwordx4 v[{d}:{d+3}], v3, s[8:11], s43 offen sc1')
                else:
                    a(f's_add_u32 s43, s40, {srel*4096 + jj*1024 + (G % 2)*512}')
                    a(f'buffer_store_dwordx2 v[{d}:{d+1}], v9, s[8:11], s43 offen sc1')
            ii += 2 if pair else 1
        if par == 0: a(f's_branch {join}')
    a.label(join)
    stp(a, 'Cst')

def phase_D(a, name):
    PD = 5
    sc = OPT['sc1']
    a('s_lshl_b32 s56, s16, 1'); a('s_lshr_b32 s57, s17, 3'); a('s_add_u32 s56, s56, s57'); a('s_and_b32 s57, s17, 7')
    a(f's_load_dwordx2 s[4:5], s[0:1], {KA["out"]}')
    big = a.newlabel('kg_n4')
    first = True
    a('s_cmp_ge_u32 s57, 4'); a(f's_cbranch_scc1 {big}')
    for NFR in (5, 4):
        if NFR == 4: a.label(big)
        S = Stream(a)
        if NFR == 5:
            a('s_mul_i32 s21, s57, 80'); a('s_mul_i32 s22, s57, 5120')
        else:
            a('s_sub_u32 s23, s57, 4'); a('s_lshl_b32 s21, s23, 6'); a('s_add_u32 s21, s21, 320'); a('s_lshl_b32 s22, s23, 12'); a(f's_add_u32 s22, s22, {20*1024}')
        a(f's_mul_i32 s23, s20, {18*36864}'); a('s_add_u32 s22, s22, s23'); a(f's_add_u32 s22, s22, {WS_WOT}')
        a(f's_mul_i32 s24, s56, {72*4096}'); a(f's_mul_i32 s23, s20, {18*4096}'); a('s_add_u32 s24, s24, s23'); a(f's_add_u32 s24, s24, {WS_ZG}')
        a('v_lshlrev_b32 v11, 3, v1')
        FR = 48
        def wreg(k, ii): return FR + (k % PD)*36 + ii*4
        def zreg(k, jj): return FR + (k % PD)*36 + 20 + jj*4
        def zl(k):
            ops = []
            for jj in range(4):
                pre = [f's_add_u32 s25, s24, {k*4096}'] if jj == 0 else []
                r = zreg(k, jj)
                if k % 9 == 4:
                    ops.append((pre, f'buffer_load_dwordx2 v[{r}:{r+1}], v11, s[8:11], s25 offen' + (f' offset:{jj*1024}' if jj else '') + sc, ('k', k)))
                    ops.append(([], f'buffer_load_dwordx2 v[{r+2}:{r+3}], v11, s[8:11], s25 offen offset:{jj*1024 + 512}' + sc, ('k', k)))
                else:
                    ops.append((pre, f'buffer_load_dwordx4 v[{r}:{r+3}], v3, s[8:11], s25 offen' + (f' offset:{jj*1024}' if jj else '') + sc, ('k', k)))
            return ops
        def wl(k):
            ops = []
            for ii in range(NFR):
                pre = [f's_add_u32 s26, s22, {k*36864}'] if ii == 0 else ([f's_add_u32 s26, s26, 4096'] if ii == 4 else [])
                ops.append((pre, f'buffer_load_dwordx4 v[{wreg(k,ii)}:{wreg(k,ii)+3}], v3, s[8:11], s26 offen' + (f' offset:{(ii%4)*1024}' if ii % 4 else ''), ('k', k)))
            return ops
        def issue(op):
            for l in op[0]: a(l)
            S.vmem(op[1], op[2])
        for k in range(PD-1):
            for op in wl(k): issue(op)
        XO = 80*1024
        a('s_lshr_b32 s27, s56, 1'); a(f's_mul_i32 s27, s27, {576*256}'); a('s_lshl_b32 s28, s21, 8'); a('s_add_u32 s27, s27, s28')
        a(f's_mul_i32 s28, s20, {NFR*1024}'); a('s_add_u32 s27, s27, s28'); a(f's_add_u32 s27, s27, {WS_X1T}')
        a(f's_add_u32 m0, s28, {XO}')
        a('s_nop 0')
        for b in range(NFR):
            if b == 4:
                a(f's_add_u32 m0, s28, {XO+4096}'); a('s_add_u32 s27, s27, 4096')
            S.vmem(f'buffer_load_dwordx4 v3, s[8:11], s27 offen' + (f' offset:{(b%4)*1024}' if b % 4 else '') + ' lds', 'X')
        GB = 228
        a('v_lshlrev_b32 v8, 4, v7'); a('s_lshl_b32 s29, s21, 2'); a(f's_add_u32 s29, s29, {WS_MOD + 5*576*4}')
        for ii in range(NFR):
            S.vmem(f'buffer_load_dwordx4 v[{GB+4*ii}:{GB+4*ii+3}], v8, s[8:11], s29 offen' + (f' offset:{ii*64}' if ii else ''), 'G')
        stp(a, 'Dld')
        a(f's_waitcnt vmcnt({len(S.vm)})')
        a('s_barrier')
        stp(a, 'Dbar')
        signal(a, CG_G, 16)
        poll(a, [(CG_G, 16)])
        stp(a, 'Dpoll')
        for op in zl(0): issue(op)
        for op in zl(1): issue(op)
        late = zl(2) + zl(3)
        for k in range(18):
            q = late if k == 0 else []
            if k + PD - 1 < 18:
                q = q + zl(k + PD - 1) + wl(k + PD - 1)
            S.wait_vm(('k', k))
            if k == 0: stp(a, 'Dk0')
            n = 0
            for ii in range(NFR):
                for jj in range(4):
                    ac = (ii*4 + jj)*4
                    a(f'v_mfma_f32_16x16x32_bf16 a[{ac}:{ac+3}], v[{wreg(k,ii)}:{wreg(k,ii)+3}], v[{zreg(k,jj)}:{zreg(k,jj)+3}], ' + (f'a[{ac}:{ac+3}]' if k else '0'))
                    n += 1
                    if q and (n % 2 == 0 or len(q) > 10): issue(q.pop(0))
            while q: issue(q.pop(0))
        stp(a, 'Dend')
        a(f's_mul_i32 s30, s20, {4*NFR*1024}'); a('v_add_u32 v9, s30, v3')
        R0 = 48
        for jj in range(4):
            for ii in range(NFR):
                ac = (ii*4 + jj)*4; r = R0 + (jj*NFR + ii)*4
                for k in range(4): a(f'v_accvgpr_read_b32 v{r+k}, a{ac+k}')
                S.ds(f'ds_write_b128 v9, v[{r}:{r+3}] offset:{(jj*NFR+ii)*1024}', 'rw')
        S.wait_lg_all(); S.wait_vm_all()
        a('s_barrier')
        a(f's_mul_i32 s30, s20, {NFR*1024}'); a('v_add_u32 v9, s30, v3')
        a(f'v_add_u32 v10, {2*4*NFR*1024}, v9')
        for src in range(4):
            for ii in range(NFR):
                r = R0 + (src*NFR + ii)*4
                S.ds(f'ds_read_b128 v[{r}:{r+3}], v{9 if src < 2 else 10} offset:{((src % 2)*4*NFR + ii)*1024}', ('rr', ii))
        X0 = 140
        a(f'v_lshrrev_b32 v{X0}, 2, v6'); a(f'v_and_b32 v{X0+1}, 3, v1')
        a(f'v_lshrrev_b32 v{X0+2}, 1, v7'); a(f'v_lshl_add_u32 v{X0+2}, v{X0+2}, 2, v{X0}'); a(f'v_lshlrev_b32 v{X0+2}, 1, v{X0+2}')
        a('s_and_b32 s31, s56, 1'); a('s_lshl_b32 s31, s31, 3'); a('s_lshl_b32 s32, s20, 1'); a('s_add_u32 s31, s31, s32')
        a(f'v_lshrrev_b32 v{X0+3}, 1, v{X0+1}'); a(f'v_add_u32 v{X0+3}, s31, v{X0+3}'); a(f'v_xor_b32 v{X0+3}, v{X0+3}, v{X0+2}')
        a(f'v_lshl_add_u32 v{X0+4}, v7, 2, v{X0}'); a(f'v_lshlrev_b32 v{X0+4}, 8, v{X0+4}'); a(f'v_lshl_add_u32 v{X0+4}, v{X0+3}, 4, v{X0+4}')
        a(f'v_and_b32 v{X0+3}, 1, v{X0+1}'); a(f'v_lshl_add_u32 v{X0+4}, v{X0+3}, 3, v{X0+4}'); a(f'v_add_u32 v{X0+4}, {XO}, v{X0+4}')
        XV = 146
        for ii in range(NFR):
            S.ds(f'ds_read_b64_tr_b16 v[{XV+2*ii}:{XV+2*ii+1}], v{X0+4} offset:{ii*4096}', ('xr', ii))
        srd(a, 4, 4, 2048*1152)
        a('s_lshl_b32 s31, s56, 6'); a('s_lshl_b32 s32, s20, 4'); a('s_add_u32 s31, s31, s32'); a('s_mul_i32 s31, s31, 1152'); a('s_lshl_b32 s32, s21, 1'); a('s_add_u32 s31, s31, s32')
        a(f'v_mul_u32_u24 v{X0+5}, 1152, v6'); a(f'v_lshl_add_u32 v{X0+5}, v7, 3, v{X0+5}')
        S.wait_lg_all()
        for ii in range(NFR):
            r0 = R0 + ii*4
            for p in range(2):
                a(f'v_pk_add_f32 v[{r0+2*p}:{r0+2*p+1}], v[{r0+2*p}:{r0+2*p+1}], v[{r0+4*NFR+2*p}:{r0+4*NFR+2*p+1}]')
                a(f'v_pk_add_f32 v[{r0+8*NFR+2*p}:{r0+8*NFR+2*p+1}], v[{r0+8*NFR+2*p}:{r0+8*NFR+2*p+1}], v[{r0+12*NFR+2*p}:{r0+12*NFR+2*p+1}]')
            for p in range(2):
                a(f'v_pk_add_f32 v[{r0+2*p}:{r0+2*p+1}], v[{r0+2*p}:{r0+2*p+1}], v[{r0+8*NFR+2*p}:{r0+8*NFR+2*p+1}]')
            x = 160
            a(f'v_lshlrev_b32 v{x}, 16, v{XV+2*ii}'); a(f'v_and_b32 v{x+1}, 0xffff0000, v{XV+2*ii}'); a(f'v_lshlrev_b32 v{x+2}, 16, v{XV+2*ii+1}'); a(f'v_and_b32 v{x+3}, 0xffff0000, v{XV+2*ii+1}')
            for p in range(2):
                a(f'v_pk_fma_f32 v[{r0+2*p}:{r0+2*p+1}], v[{r0+2*p}:{r0+2*p+1}], v[{GB+4*ii+2*p}:{GB+4*ii+2*p+1}], v[{x+2*p}:{x+2*p+1}]')
            o = 164 + 2*(ii % 2)
            a(f'v_cvt_pk_bf16_f32 v{o}, v{r0}, v{r0+1}'); a(f'v_cvt_pk_bf16_f32 v{o+1}, v{r0+2}, v{r0+3}')
            a(f'buffer_store_dwordx2 v[{o}:{o+1}], v{X0+5}, s[4:7], s31 offen' + (f' offset:{ii*32}' if ii else ''))
        if NFR == 5: a(f's_branch {name}_exit')

def gen_kg(a, kidx=2):
    name = 'kg_kernel'
    kstart(a, name, 252, nloads=3)
    a('s_cmp_ge_u32 s2, 256'); a(f's_cbranch_scc1 {name}_exit')
    a(f's_load_dwordx2 s[8:9], s[0:1], {KA["ws"]}')
    a(f's_load_dwordx2 s[4:5], s[0:1], {KA["w_sp"]}')
    kb_tile(a, 16, 17, 18, 19)
    a('v_and_b32 v1, 63, v0'); a('v_lshrrev_b32 v2, 6, v0')
    a('v_readfirstlane_b32 s20, v2')
    a('v_lshlrev_b32 v3, 4, v1')
    a('v_add_u32 v4, 0x10000, v3'); a('v_add_u32 v5, 0x20000, v3')
    a('v_and_b32 v6, 15, v1'); a('v_lshrrev_b32 v7, 4, v1')
    phase_B(a, name)
    phase_C(a, name)
    phase_D(a, name)
    kexit(a, name, kidx)
    return dict(name=name, grid=256, block=256, lds=160000 + 1024, vgpr=256+256, accum=256, sgpr=102)
```
